```python
import torch

def _softmax(x, axis=-1):
    return torch.softmax(x, dim=axis)
def _gelu(x):
    return torch.nn.functional.gelu(x, approximate="tanh")
def _silu(x):
    return torch.nn.functional.silu(x)
def _sigmoid(x):
    return torch.sigmoid(x)
def _layernorm(x, axis=-1, eps=1e-5):
    m = x.mean(dim=axis, keepdim=True)
    v = x.var(dim=axis, keepdim=True, unbiased=False)
    return (x - m) / torch.sqrt(v + eps)
def _scatter_add(tgt, idx, src, axis=0):
    return tgt.clone().index_add_(axis, idx, src)
def _segment_sum(src, seg, n):
    out = torch.zeros((n,) + src.shape[1:], dtype=src.dtype)
    return out.index_add_(0, seg, src)
def _pad(x, pw):
    flat = tuple(v for pair in reversed(pw) for v in pair)
    return torch.nn.functional.pad(x, flat)

kernel_name = 'parallel_sum__sliding_block_cached__dense_activation_silu__decode'

def setup_inputs():

    _w = (lambda a: (lambda t: t.to(torch.bfloat16) if t.is_floating_point() else t)(torch.as_tensor(a)))
    def _A_setup():
        B, Sq, D = 1, 1, 1024
        Hq, Hkv, Sk, Dh = 32, 4, 65536, 128
        assert Hq % Hkv == 0, (Hq, Hkv)
        return {
            "x": _w((lambda *s: torch.randn(*s, dtype=torch.bfloat16) * 0.05)(B, Sq, D)),
            "k_cache": _w((lambda *s: torch.randn(*s, dtype=torch.bfloat16) * 3.2)(B, Hkv, Sk, Dh)),
            "v_cache": _w((lambda *s: torch.randn(*s, dtype=torch.bfloat16) * 0.8)(B, Hkv, Sk, Dh)),
            "wq": _w((lambda *s: torch.randn(*s, dtype=torch.bfloat16) * 3.2)(D, Hq * Dh) * (D ** -0.5)),
            "wo": _w((lambda *s: torch.randn(*s, dtype=torch.bfloat16) * 0.8)(Hq * Dh, D) * ((Hq * Dh) ** -0.5)),
        }
    _A_in = _A_setup()

    def _B_setup():
        B, S, D, F = 1, 1, 1024, 3584
        return {
            "x": _w((lambda *s: torch.randn(*s, dtype=torch.bfloat16) * 0.05)(B, S, D)),
            "w1": _w((lambda *s: torch.randn(*s, dtype=torch.bfloat16) * 3.2)(D, F) * (D ** -0.5)),
            "w2": _w((lambda *s: torch.randn(*s, dtype=torch.bfloat16) * 0.2)(F, D) * (F ** -0.5)),
        }
    _B_in = _B_setup()

    return {
        "A_x": _A_in["x"],
        "A_k_cache": _A_in["k_cache"],
        "A_v_cache": _A_in["v_cache"],
        "A_wq": _A_in["wq"],
        "A_wo": _A_in["wo"],
        "B_x": _B_in["x"],
        "B_w1": _B_in["w1"],
        "B_w2": _B_in["w2"],
    }

def reference(A_x, A_k_cache, A_v_cache, A_wq, A_wo, B_x, B_w1, B_w2):
    def _A_ref(x, k_cache, v_cache, wq, wo):
        B, Sq, D = x.shape
        Hq, Dh = 32, 128
        Hkv, Sk = k_cache.shape[1], k_cache.shape[2]
        W = min(4096, max(256, Sk // 4))
        rep = Hq // Hkv
        q = (lambda x, *d: x.permute(*d))((x @ wq).reshape(B, Sq, Hq, Dh), 0, 2, 1, 3)
        k = (lambda x, n, axis: torch.repeat_interleave(x, n, dim=axis))(k_cache[:, :, Sk - W:, :], rep, axis=1)
        v = (lambda x, n, axis: torch.repeat_interleave(x, n, dim=axis))(v_cache[:, :, Sk - W:, :], rep, axis=1)
        scores = torch.einsum("bhqd,bhkd->bhqk", q, k) * (Dh ** -0.5)
        p = _softmax(scores, axis=-1)
        o = torch.einsum("bhqk,bhkd->bhqd", p, v)
        return (lambda x, *d: x.permute(*d))(o, 0, 2, 1, 3).reshape(B, Sq, Hq * Dh) @ wo

    def _B_ref(x, w1, w2):
        h = torch.einsum("bsd,df->bsf", x, w1)
        h = _silu(h)
        out = torch.einsum("bsf,fd->bsd", h, w2)
        return out

    x = A_x
    xn = _layernorm(x, axis=-1)
    return x + _A_ref(xn, A_k_cache, A_v_cache, A_wq, A_wo) + _B_ref(xn, B_w1, B_w2)
```

```python
import re
def regs(tok):
    tok = tok.strip()
    tok = tok.lstrip('-')
    m = re.fullmatch(r'abs\((.*)\)', tok)
    if m: tok = m.group(1)
    m = re.fullmatch(r'([vs])(\d+)', tok)
    if m: return [(m.group(1), int(m.group(2)))]
    m = re.fullmatch(r'([vs])\[(\d+):(\d+)\]', tok)
    if m: return [(m.group(1), i) for i in range(int(m.group(2)), int(m.group(3)) + 1)]
    if tok == 'vcc': return [('s', 106), ('s', 107)]
    if tok == 'exec': return [('s', 126), ('s', 127)]
    return []
TRANS = ('v_exp_f32', 'v_log_f32', 'v_rcp_f32', 'v_rsq_f32', 'v_sqrt_f32')
class Asm:
    def __init__(self):
        self.lines = []
        self.hist = []
        self.maxv = 0
    def raw(self, s): self.lines.append(s)
    def label(self, l):
        self.flush(); self.lines.append(l + ':')
    def flush(self, n=None):
        need = 0
        for d, h in enumerate(reversed(self.hist[-12:])):
            k = h[0]
            w = {'mfma': 8, 'valu': 2, 'trans': 2, 'store4': 2}.get(k, 0)
            if k in ('valu', 'trans') and any(r[0] == 's' for r in h[1]): w = 5
            need = max(need, w - d)
        if need > 0: self.nop(need)
    def nop(self, n):
        while n > 0:
            k = min(n, 16)
            self.lines.append(f'    s_nop {k-1}')
            self.hist += [('nop', [], [], None)] * k
            n -= k
    def __call__(self, s):
        for line in s.split('\n'):
            line = line.split(';')[0].strip()
            if line: self.ins(line)
    def ins(self, line):
        op = line.split()[0]
        rest = line[len(op):]
        toks = [t.strip() for t in re.split(r',(?![^\[]*\])', rest)]
        ops = []
        for t in toks:
            ops.append(t.split()[0] if t.split() else '')
        R = [regs(o) for o in ops]
        for rr in R:
            for r in rr:
                if r[0] == 'v': self.maxv = max(self.maxv, r[1])
        kind = 'other'; writes = []; reads = []; extra = None
        dpp = '_dpp' in op
        if op.startswith('v_mfma'):
            kind = 'mfma'; writes = R[0]; reads = R[1] + R[2] + R[3]; extra = (R[1] + R[2], R[3])
        elif op.startswith('v_permlane'):
            kind = 'valu'; writes = R[0] + R[1]; reads = R[0] + R[1]
        elif op.startswith('v_cmp'):
            kind = 'valu'; writes = R[0]; reads = sum(R[1:], [])
        elif op.startswith('v_'):
            kind = 'trans' if op.replace('_e32', '').replace('_e64', '') in TRANS else 'valu'
            writes = R[0]; reads = sum(R[1:], [])
            if op.startswith('v_fmac') or op.startswith('v_dot2c') or dpp: reads = reads + R[0]
        elif op.startswith('buffer_load') or op.startswith('global_load'):
            kind = 'vmem'; writes = R[0]; reads = sum(R[1:], [])
        elif op.startswith('buffer_store') or op.startswith('global_store'):
            kind = 'store4' if ('x4' in op or 'x3' in op) else 'vmem'; reads = sum(R, [])
            extra = R[0] if op.startswith('buffer') else R[1]
        elif op.startswith('ds_read'):
            kind = 'vmem'; writes = R[0]; reads = sum(R[1:], [])
        elif op.startswith('ds_'):
            kind = 'vmem'; reads = sum(R, [])
            if '_rtn' in op or 'permute' in op: writes = R[0]
        elif op.startswith('s_cbranch') or op.startswith('s_branch'):
            self.flush()
        isvalu = kind in ('valu', 'trans')
        need = 0
        rs = set(reads); ws = set(writes)
        for d, h in enumerate(reversed(self.hist[-20:])):
            hk, hw, hr, hx = h
            hw = set(hw)
            w = 0
            if hk in ('valu', 'trans'):
                vw = {r for r in hw if r[0] == 'v'}; sw = {r for r in hw if r[0] == 's'}
                if vw & rs:
                    if dpp or op.startswith('v_permlane') or kind == 'mfma': w = max(w, 2)
                    if op.startswith('v_readlane') or op.startswith('v_readfirstlane'): w = max(w, 1)
                    if hk == 'trans' and isvalu: w = max(w, 1)
                if sw & rs:
                    if isvalu: w = max(w, 4 if op.startswith('v_readlane') else 2)
                    if kind in ('vmem', 'store4'): w = max(w, 5)
            if hk == 'mfma':
                if kind == 'mfma':
                    if hw & set(extra[0]): w = max(w, 8)
                    if hw & set(extra[1]) and hw != set(extra[1]): w = max(w, 6)
                    if hw & ws and hw != set(extra[1]): w = max(w, 8)
                elif kind != 'other':
                    if hw & (rs | ws): w = max(w, 8)
                    if isvalu and set(hx[1]) & ws: w = max(w, 3)
            if hk == 'store4' and (set(hx) & ws): w = max(w, 2)
            need = max(need, w - d)
        if need > 0: self.nop(need)
        self.lines.append('    ' + line)
        if op == 's_nop':
            self.hist += [('nop', [], [], None)] * (int(ops[0]) + 1)
        else:
            self.hist.append((kind, writes, reads, extra))
    def text(self): return '\n'.join(self.lines) + '\n'
```

```python
import sys
from asmlib import Asm
NAME = "parallel_sum__sliding_block_cached__dense_activation_silu__decode"
QP, HP, OP, LP, FP, TSB = 0x1000, 0x11000, 0x20000, 0x120000, 0x130000, 0x8000000
L_FA, L_FB, L_FO, L_FH, L_XQ, L_X1, L_O, L_H = 0, 4, 8, 12, 64, 576, 1088, 1216
SPIN = 100000

def gen(diag=False, nt_w='nt', nt_k='nt', nt_v='nt', st='sc1', ld='sc1', slp=2):
    a = Asm()
    uid = [0]
    def L(p):
        uid[0] += 1; return f'L{p}{uid[0]}'
    def TS(i):
        if diag: a(f's_memrealtime s[{64+2*i}:{65+2*i}]')
    def srd(d, b, size):
        a(f's_mov_b32 s{d}, s{b}\n s_and_b32 s{d+1}, s{b+1}, 0xffff\n s_mov_b32 s{d+2}, {size}\n s_mov_b32 s{d+3}, 0x20000')
    def xor16_32(v, t, op):
        for sw in ('v_permlane16_swap_b32', 'v_permlane32_swap_b32'):
            a(f'v_mov_b32 v{t}, v{v}\n {sw} v{v}, v{t}\n {op} v{v}, v{v}, v{t}')
    def rowred(v, op):
        for r in (8, 4, 2, 1):
            a(f'{op}_dpp v{v}, v{v}, v{v} row_ror:{r} row_mask:0xf bank_mask:0xf')
    def ldsspin(off, sdst, vt=4):
        l = L('sp'); d = L('sd')
        a(f's_mov_b32 s58, {SPIN}\n v_mov_b32 v{vt}, 0')
        a.label(l)
        a(f'ds_read_b32 v{vt+1}, v{vt} offset:{off}\n s_waitcnt lgkmcnt(0)\n v_readfirstlane_b32 s{sdst}, v{vt+1}')
        a(f's_nop 0\n s_cmp_lg_u32 s{sdst}, 0\n s_cbranch_scc1 {d}\n s_sleep 1\n s_sub_u32 s58, s58, 1\n s_cbranch_scc0 {l}')
        a.label(d)
    def ldsflag(off, src, vt=4):
        a(f'v_mov_b32 v{vt}, 0\n v_mov_b32 v{vt+1}, {src}\n s_waitcnt lgkmcnt(0)\n ds_write_b32 v{vt}, v{vt+1} offset:{off}')
    def settag():
        a('s_and_b32 s48, s48, 0xff\n s_mul_i32 s50, s48, 0x01010101\n s_mov_b32 s49, 0xffffff00')
    def tagcheck(regs, t0, t1, t2):
        prs = [(regs[i], regs[i+1]) for i in range(0, len(regs), 2)]
        a(f'v_bitop3_b32 v{t0}, v{prs[0][0]}, v{prs[0][1]}, s48 bitop3:0x7e')
        i = 1
        while i < len(prs):
            if i + 1 < len(prs):
                a(f'v_bitop3_b32 v{t1}, v{prs[i][0]}, v{prs[i][1]}, s48 bitop3:0x7e')
                a(f'v_bitop3_b32 v{t2}, v{prs[i+1][0]}, v{prs[i+1][1]}, s48 bitop3:0x7e')
                a(f'v_or3_b32 v{t0}, v{t0}, v{t1}, v{t2}'); i += 2
            else:
                a(f'v_bitop3_b32 v{t1}, v{prs[i][0]}, v{prs[i][1]}, s48 bitop3:0x7e')
                a(f'v_or_b32 v{t0}, v{t0}, v{t1}'); i += 1
        a(f'v_and_b32 v{t0}, 0xff, v{t0}')
    def poll(loads, check, res):
        l = L('pl'); d = L('pd')
        a(f's_mov_b32 s58, {SPIN}')
        a.label(l)
        loads()
        a('s_waitcnt vmcnt(0)')
        check()
        a(f'v_cmp_ne_u32 vcc, 0, v{res}\n s_cbranch_vccz {d}\n s_sleep {slp}\n s_sub_u32 s58, s58, 1\n s_cbranch_scc0 {l}')
        a.label(d)
    def transpose_pair(src, dst, p):
        for c in range(4):
            a(f'v_perm_b32 v{dst+8*c+p}, v{src+8*p+4+c}, v{src+8*p+c}, s46')
            a(f'v_perm_b32 v{dst+8*c+4+p}, v{src+8*p+4+c}, v{src+8*p+c}, s47')
    def mfma(d, A, B, first):
        a(f'v_mfma_f32_16x16x32_bf16 v[{d}:{d+3}], v[{A}:{A+3}], v[{B}:{B+3}], ' + ('0' if first else f'v[{d}:{d+3}]'))

    a('s_cmp_ge_u32 s2, 256\n s_cbranch_scc1 Lend')
    a('s_load_dwordx16 s[8:23], s[0:1], 0\n s_load_dwordx4 s[24:27], s[0:1], 64\n s_load_dwordx2 s[28:29], s[0:1], 80')
    if diag:
        for i in range(64, 96): a(f's_mov_b32 s{i}, 0')
    TS(0)
    a('v_lshrrev_b32 v1, 6, v0\n v_and_b32 v0, 63, v0\n v_readfirstlane_b32 s3, v1\n v_and_b32 v1, 15, v0\n v_lshrrev_b32 v2, 4, v0')
    a('s_mov_b32 s46, 0x05040100\n s_mov_b32 s47, 0x07060302\n s_and_b32 s4, s2, 3\n s_lshr_b32 s5, s2, 2')
    a('s_cmp_eq_u32 s3, 1\n s_cbranch_scc1 Lattn\n s_cmp_ge_u32 s3, 3\n s_cbranch_scc1 Lgb')
    a('v_lshrrev_b32 v3, 3, v1\n v_lshlrev_b32 v3, 2, v3\n v_add_u32 v3, v3, v2\n v_lshlrev_b32 v3, 3, v3')
    a('s_lshl_b32 s6, s4, 8\n v_add_u32 v3, s6, v3\n v_and_b32 v4, 7, v1\n v_lshlrev_b32 v4, 4, v4\n s_lshl_b32 s7, s5, 7\n v_add_u32 v4, s7, v4')
    a('v_lshlrev_b32 v5, 5, v0\n s_lshl_b32 s6, s4, 9\n v_lshl_add_u32 v6, v0, 3, s6')
    a('s_cmp_eq_u32 s3, 0\n s_mov_b32 s45, 7168\n s_cmov_b32 s45, 8192\n v_mad_u32_u24 v3, v3, s45, v4')
    a(f's_mov_b32 s34, 7340032\n s_cmov_b32 s34, 8388608\n s_mov_b32 s51, {HP}\n s_cmov_b32 s51, {QP}\n s_cselect_b32 s52, {L_XQ}, {L_X1}\n s_mov_b32 s35, 0x20000')
    a('s_waitcnt lgkmcnt(0)')
    TS(1)
    a('s_cselect_b32 s32, s14, s20\n s_cselect_b32 s33, s15, s21\n s_and_b32 s33, s33, 0xffff')
    srd(40, 8, 2048)
    a('buffer_load_dwordx4 v[8:11], v5, s[40:43], 0 offen\n buffer_load_dwordx4 v[12:15], v5, s[40:43], 0 offen offset:16\n buffer_load_dwordx2 v[16:17], v6, s[40:43], 0 offen')
    srd(36, 28, 0x10000000 if diag else 0x200000)
    a('s_cmp_eq_u32 s3, 0\n s_cbranch_scc1 Lga_go')
    a('s_barrier')
    ldsspin(L_FA, 48)
    a('s_cmp_ge_u32 s2, 224\n s_cbranch_scc0 Lga_go')
    ldsflag(L_FB, 's48'); settag()
    a('s_branch Lhgather')
    a.label('Lga_go')
    a('s_mov_b32 s44, 0\n s_mul_i32 s53, s45, 57')
    for t in range(4):
        for j in range(8):
            r = 128 + 32 * t + 4 * j
            a(f'buffer_load_dwordx4 v[{r}:{r+3}], v3, s[32:35], s44 offen {nt_w}')
            if (t, j) != (3, 7): a(f's_add_u32 s44, s44, {"s53" if j == 7 else "s45"}')
    TS(2)
    a('s_cmp_eq_u32 s3, 0\n s_cbranch_scc0 Lga_1')
    a('v_mov_b32 v20, 0\n v_mov_b32 v21, 0\n v_mov_b32 v22, 0\n v_mov_b32 v23, 0\n v_mov_b32 v4, 0\n ds_write_b128 v4, v[20:23]\n s_waitcnt lgkmcnt(0)\n s_barrier\n s_branch Lga_ln')
    a.label('Lga_1')
    ldsflag(L_FB, 's48')
    a.label('Lga_ln')
    a('s_waitcnt vmcnt(32)')
    TS(3)
    for i in range(8):
        a(f'v_lshlrev_b32 v{20+2*i}, 16, v{8+i}\n v_and_b32 v{21+2*i}, 0xffff0000, v{8+i}')
    a('v_add_f32 v36, v20, v21')
    for i in range(22, 36): a(f'v_add_f32 v36, v36, v{i}')
    rowred(36, 'v_add_f32'); xor16_32(36, 37, 'v_add_f32')
    a('v_mul_f32 v36, 0x3a800000, v36')
    for i in range(20, 36): a(f'v_sub_f32 v{i}, v{i}, v36')
    a('v_mul_f32 v38, v20, v20')
    for i in range(21, 36): a(f'v_fmac_f32 v38, v{i}, v{i}')
    rowred(38, 'v_add_f32'); xor16_32(38, 37, 'v_add_f32')
    a('v_mul_f32 v38, 0x3a800000, v38\n v_cvt_pk_bf16_f32 v36, v36, v38')
    a('v_and_b32 v38, 0xffff0000, v36\n v_lshlrev_b32 v36, 16, v36\n v_add_f32 v38, 0x3727c5ac, v38')
    a('v_cvt_pk_bf16_f32 v38, v38, v38\n v_lshlrev_b32 v38, 16, v38\n v_sqrt_f32 v38, v38\n v_cvt_pk_bf16_f32 v38, v38, v38\n v_lshlrev_b32 v38, 16, v38\n v_rcp_f32 v38, v38')
    a('v_lshlrev_b32 v20, 16, v16\n v_and_b32 v21, 0xffff0000, v16\n v_lshlrev_b32 v22, 16, v17\n v_and_b32 v23, 0xffff0000, v17')
    for i in range(20, 24): a(f'v_sub_f32 v{i}, v{i}, v36')
    a('v_cvt_pk_bf16_f32 v16, v20, v21\n v_cvt_pk_bf16_f32 v17, v22, v23')
    a('v_lshlrev_b32 v20, 16, v16\n v_and_b32 v21, 0xffff0000, v16\n v_lshlrev_b32 v22, 16, v17\n v_and_b32 v23, 0xffff0000, v17')
    for i in range(20, 24): a(f'v_mul_f32 v{i}, v{i}, v38')
    a('v_cvt_pk_bf16_f32 v16, v20, v21\n v_cvt_pk_bf16_f32 v17, v22, v23')
    a('v_lshl_add_u32 v4, v0, 3, s52\n ds_write_b64 v4, v[16:17]')
    a('v_and_b32 v5, 1, v0\n v_lshlrev_b32 v5, 2, v5\n v_add_u32 v5, v5, v2\n v_lshl_add_u32 v5, v5, 4, s52\n s_waitcnt lgkmcnt(0)')
    for t in range(4): a(f'ds_read_b128 v[{40+4*t}:{43+4*t}], v5 offset:{128*t}')
    TS(4)
    for t in range(4):
        for p in range(4):
            a(f's_waitcnt vmcnt({30 - 8*t - 2*p})')
            transpose_pair(128 + 32 * t, 96 + 32 * t, p)
        if t == 0: a('s_waitcnt lgkmcnt(0)')
        for i in range(8): mfma(56 + 4 * i, 40 + 4 * t, 96 + 32 * t + 4 * i, t == 0)
    TS(5)
    ldsspin(L_FA, 48); settag()
    for i in range(8): a(f'v_add_f32_dpp v{20+i}, v{57+4*i}, v{56+4*i} row_ror:8 row_mask:0xf bank_mask:0xf')
    a('v_cmp_eq_u32 vcc, 1, v2\n v_mov_b32 v7, s48')
    for c in range(4): a(f'v_cndmask_b32 v{20+c}, v{20+c}, v{24+c}, vcc')
    for c in range(4): a(f'v_bfi_b32 v{20+c}, s49, v{20+c}, v7')
    a('v_lshrrev_b32 v4, 2, v1\n v_lshl_add_u32 v4, v4, 1, v2\n v_and_b32 v5, 3, v1\n v_lshl_add_u32 v4, v4, 2, v5\n s_lshl_b32 s6, s2, 8\n s_add_u32 s6, s6, s51\n v_lshl_add_u32 v4, v4, 4, s6')
    a(f's_mov_b64 exec, 0x00ff00ff\n buffer_store_dwordx4 v[20:23], v4, s[36:39], 0 offen {st}\n s_mov_b64 exec, -1')
    TS(6)
    a('s_cmp_eq_u32 s3, 0\n s_cbranch_scc0 Lhgather')
    a(f's_lshl_b32 s6, s5, 14\n s_add_u32 s6, s6, {OP}\n v_lshlrev_b32 v3, 12, v2\n v_lshl_add_u32 v3, v1, 4, v3\n v_add_u32 v3, s6, v3')
    a(f's_lshr_b32 s6, s5, 1\n s_lshl_b32 s6, s6, 10\n s_add_u32 s6, s6, {LP}\n v_lshl_add_u32 v5, v0, 4, s6')
    def lo1(): a(f'buffer_load_dwordx4 v[8:11], v5, s[36:39], 0 offen {ld}')
    poll(lo1, lambda: a('v_xor_b32 v12, s50, v10'), 12)
    TS(7)
    def lo2():
        for u in range(16): a(f'buffer_load_dwordx4 v[{128+4*u}:{131+4*u}], v3, s[36:39], 0 offen offset:{256*u} {ld}')
    first = [True]
    poll(lo2, lambda: tagcheck(list(range(128, 192)), 12, 13, 14), 12)
    TS(8)
    a('v_mov_b32 v12, v8'); rowred(12, 'v_max_f32'); xor16_32(12, 13, 'v_max_f32')
    a('v_sub_f32 v8, v8, v12\n v_exp_f32 v8, v8\n v_mul_f32 v9, v8, v9')
    for c in range(4): a(f'v_mul_f32_dpp v{20+c}, v8, v{128+c} row_newbcast:0 row_mask:0xf bank_mask:0xf')
    for u in range(1, 16):
        for c in range(4): a(f'v_fmac_f32_dpp v{20+c}, v8, v{128+4*u+c} row_newbcast:{u} row_mask:0xf bank_mask:0xf')
    rowred(9, 'v_add_f32'); xor16_32(9, 13, 'v_add_f32')
    a('v_rcp_f32 v9, v9')
    for c in range(4): xor16_32(20 + c, 24 + c, 'v_add_f32')
    for c in range(4): a(f'v_mul_f32 v{20+c}, v{20+c}, v9')
    a('v_cvt_pk_bf16_f32 v20, v20, v21\n v_cvt_pk_bf16_f32 v21, v22, v23')
    a('v_and_b32 v4, 3, v1\n v_lshlrev_b32 v4, 5, v4\n v_lshrrev_b32 v5, 3, v1\n v_lshl_add_u32 v4, v5, 4, v4\n v_bfe_u32 v5, v1, 2, 1\n v_lshl_add_u32 v4, v5, 3, v4')
    a(f'ds_write_b64 v4, v[20:21] offset:{L_O}')
    ldsflag(L_FO, '1')
    TS(9)
    a('s_branch Lfin')
    a.label('Lhgather')
    a('v_min_u32 v4, 13, v1\n s_mul_i32 s6, s5, 14\n v_add_u32 v4, s6, v4')
    a('v_lshrrev_b32 v5, 4, v4\n v_lshl_add_u32 v5, v5, 2, v2\n v_lshlrev_b32 v5, 8, v5')
    a('v_bfe_u32 v6, v4, 3, 1\n v_lshl_add_u32 v5, v6, 7, v5\n v_and_b32 v6, 1, v4\n v_lshl_add_u32 v5, v6, 6, v5\n v_bfe_u32 v6, v4, 1, 2\n v_lshl_add_u32 v5, v6, 4, v5')
    a(f'v_add_u32 v5, {HP}, v5')
    def lh(): a(f'buffer_load_dwordx4 v[8:11], v5, s[36:39], 0 offen {ld}')
    poll(lh, lambda: tagcheck([8, 9, 10, 11], 12, 13, 14), 12)
    TS(8)
    for c in range(4): xor16_32(8 + c, 12 + c, 'v_add_f32')
    a('v_cvt_pk_bf16_f32 v8, v8, v9\n v_cvt_pk_bf16_f32 v10, v10, v11')
    a('v_and_b32 v9, 0xffff0000, v8\n v_lshlrev_b32 v8, 16, v8\n v_and_b32 v11, 0xffff0000, v10\n v_lshlrev_b32 v10, 16, v10')
    for c in range(4): a(f'v_mul_f32 v{12+c}, 0xbfb8aa3b, v{8+c}')
    for c in range(4): a(f'v_exp_f32 v{12+c}, v{12+c}')
    for c in range(4): a(f'v_add_f32 v{12+c}, 1.0, v{12+c}')
    for c in range(4): a(f'v_rcp_f32 v{12+c}, v{12+c}')
    for c in range(4): a(f'v_mul_f32 v{8+c}, v{8+c}, v{12+c}')
    a('v_cvt_pk_bf16_f32 v8, v8, v9\n v_cvt_pk_bf16_f32 v9, v10, v11\n v_cmp_gt_u32 vcc, 14, v1\n v_cndmask_b32 v8, 0, v8, vcc\n v_cndmask_b32 v9, 0, v9, vcc')
    a(f'v_lshlrev_b32 v4, 3, v1\n ds_write_b64 v4, v[8:9] offset:{L_H}')
    ldsflag(L_FH, '1')
    TS(9)
    a('s_branch Lfin')

    a.label('Lattn')
    a('s_lshr_b32 s6, s2, 6\n s_and_b32 s7, s2, 63')
    a('s_lshl_b32 s44, s6, 24\n s_lshl_b32 s45, s7, 14\n s_add_u32 s44, s44, s45\n s_add_u32 s44, s44, 15728640')
    a('v_lshlrev_b32 v3, 8, v1\n v_lshl_add_u32 v3, v2, 4, v3')
    a('v_bfe_u32 v4, v1, 1, 1\n v_lshlrev_b32 v5, 7, v4\n v_lshrrev_b32 v4, 2, v1\n v_lshl_add_u32 v5, v4, 5, v5\n v_and_b32 v4, 1, v1\n v_lshl_add_u32 v5, v4, 4, v5\n v_lshl_add_u32 v5, v2, 10, v5')
    a('s_waitcnt lgkmcnt(0)')
    TS(1)
    a('s_load_dword s48, s[28:29], 0')
    srd(32, 10, 67108864); srd(40, 12, 67108864); srd(36, 28, 0x10000000 if diag else 0x200000)
    a('s_add_u32 s45, s44, 4096\n s_add_u32 s52, s44, 8192\n s_add_u32 s53, s44, 12288')
    so = ['s44', 's45', 's52', 's53']
    a('s_barrier')
    for T in range(4):
        for ks in range(4):
            r = 128 + (T * 4 + ks) * 4
            a(f'buffer_load_dwordx4 v[{r}:{r+3}], v3, s[32:35], {so[T]} offen offset:{64*ks} {nt_k}')
    for p in range(2):
        for j in range(8):
            r = 192 + p * 32 + j * 4
            a(f'buffer_load_dwordx4 v[{r}:{r+3}], v5, s[40:43], {so[2*p + (j>>2)]} offen offset:{256*(j&3)} {nt_v}')
    a('s_waitcnt lgkmcnt(0)\n s_add_u32 s48, s48, 1\n s_or_b32 s48, s48, 0x100')
    ldsflag(L_FA, 's48', 6); settag()
    TS(2)
    a(f's_lshl_b32 s54, s6, 14\n s_add_u32 s54, s54, {QP}\n v_and_b32 v4, 7, v1\n v_lshlrev_b32 v3, 11, v4\n v_lshrrev_b32 v6, 3, v1\n v_lshl_add_u32 v3, v6, 9, v3\n v_lshl_add_u32 v3, v2, 4, v3\n v_add_u32 v3, s54, v3')
    a(f's_lshl_b32 s54, s6, 18\n s_lshl_b32 s55, s7, 8\n s_add_u32 s54, s54, s55\n s_add_u32 s54, s54, {OP}\n v_lshlrev_b32 v5, 15, v4\n v_lshl_add_u32 v5, v6, 6, v5\n v_lshl_add_u32 v5, v2, 4, v5\n v_add_u32 v5, s54, v5')
    a(f's_lshl_b32 s54, s6, 13\n s_lshl_b32 s55, s7, 4\n s_add_u32 s54, s54, s55\n s_add_u32 s54, s54, {LP}\n v_lshl_add_u32 v7, v4, 10, s54\n s_movk_i32 s55, 0x4000')
    for p in range(2):
        for q in range(4):
            a(f's_waitcnt vmcnt({14 - 8*p - 2*q})')
            transpose_pair(192 + 32 * p, 96 if p == 0 else 192, q)
    VT = [96, 192]
    TS(3)
    def lq():
        for ks in range(4):
            for gh in range(2):
                for k1 in range(2):
                    r = 32 + ((ks * 2 + gh) * 2 + k1) * 4
                    a(f'buffer_load_dwordx4 v[{r}:{r+3}], v3, s[36:39], 0 offen offset:{(ks>>1)*1024 + k1*256 + (ks&1)*128 + gh*64} {ld}')
    poll(lq, lambda: tagcheck(list(range(32, 96)), 8, 9, 10), 8)
    TS(4)
    for e in range(8):
        for c in range(4): a(f'v_add_f32 v{32+8*e+c}, v{32+8*e+c}, v{36+8*e+c}')
    for e in range(8):
        for c in range(4): a(f'v_add_f32_dpp v{32+8*e+c}, v{32+8*e+c}, v{32+8*e+c} row_ror:8 row_mask:0xf bank_mask:0xf')
    for e in range(8):
        a(f'v_cvt_pk_bf16_f32 v{16+2*e}, v{32+8*e}, v{33+8*e}\n v_cvt_pk_bf16_f32 v{17+2*e}, v{34+8*e}, v{35+8*e}')
    for ks in range(4):
        for T in range(4): mfma(32 + 4 * T, 128 + (T * 4 + ks) * 4, 16 + 4 * ks, ks == 0)
    a('s_mov_b32 s56, 0x3db504f3\n s_mov_b32 s57, 0x3fb8aa3b')
    for e in range(8): a(f'v_cvt_pk_bf16_f32 v{48+e}, v{32+2*e}, v{33+2*e}')
    for e in range(8): a(f'v_lshlrev_b32 v{32+2*e}, 16, v{48+e}\n v_and_b32 v{33+2*e}, 0xffff0000, v{48+e}')
    for e in range(16): a(f'v_mul_f32 v{32+e}, s56, v{32+e}')
    for e in range(8): a(f'v_cvt_pk_bf16_f32 v{48+e}, v{32+2*e}, v{33+2*e}')
    for e in range(8): a(f'v_lshlrev_b32 v{32+2*e}, 16, v{48+e}\n v_and_b32 v{33+2*e}, 0xffff0000, v{48+e}')
    a('v_max_f32 v8, v32, v33')
    for e in range(1, 8): a(f'v_max3_f32 v8, v8, v{32+2*e}, v{33+2*e}')
    xor16_32(8, 9, 'v_max_f32')
    a('v_mul_f32 v8, s57, v8')
    for e in range(16): a(f'v_fma_f32 v{32+e}, v{32+e}, s57, -v8')
    for e in range(16): a(f'v_exp_f32 v{32+e}, v{32+e}')
    for e in range(8): a(f'v_cvt_pk_bf16_f32 v{48+e}, v{32+2*e}, v{33+2*e}')
    for p in range(2):
        for i in range(8): mfma(224 + 4 * i, VT[p] + 4 * i, 48 + 4 * p, p == 0)
    a('v_add_f32 v9, v32, v33')
    for e in range(2, 16): a(f'v_add_f32 v9, v9, v{32+e}')
    xor16_32(9, 12, 'v_add_f32')
    a('v_mov_b32 v10, s50\n v_mov_b32 v11, s50\n v_cmp_lt_u32 vcc, 7, v1\n v_mov_b32 v12, s48')
    for r in range(4):
        for c in range(4): a(f'v_cndmask_b32 v{64+4*r+c}, v{224+4*c+r}, v{240+4*c+r}, vcc')
        for c in range(4): a(f'v_bfi_b32 v{64+4*r+c}, s49, v{64+4*r+c}, v12')
        a(f'buffer_store_dwordx4 v[{64+4*r}:{67+4*r}], v5, s[36:39], {"s55" if r >= 2 else "0"} offen offset:{128*(r&1)} {st}')
    a(f's_mov_b64 exec, 0xff\n buffer_store_dwordx4 v[8:11], v7, s[36:39], 0 offen {st}\n s_mov_b64 exec, -1')
    TS(5)
    a('s_branch Lfin')

    a.label('Lgb')
    a('s_cmp_eq_u32 s3, 4\n s_cselect_b32 s6, 64, 56\n s_mul_i32 s6, s6, s5\n s_lshl_b32 s6, s6, 11\n s_lshl_b32 s7, s4, 9\n s_add_u32 s6, s6, s7')
    a('v_lshlrev_b32 v3, 14, v2\n v_lshl_add_u32 v3, v1, 4, v3\n v_add_u32 v3, s6, v3')
    a('s_cmp_eq_u32 s3, 4\n s_cselect_b32 s7, 4, 3\n v_cmp_eq_u32 vcc, s7, v2\n v_mov_b32 v6, 0x7f000000\n v_cndmask_b32 v6, v3, v6, vcc')
    a(f's_mov_b32 s34, 7340032\n s_cmov_b32 s34, 8388608\n s_mov_b32 s35, 0x20000\n s_mov_b32 s52, {L_H}\n s_cmov_b32 s52, {L_O}\n s_cselect_b32 s53, {L_FO}, {L_FH}\n s_cselect_b32 s51, 0, 1024')
    a('s_waitcnt lgkmcnt(0)')
    TS(1)
    a('s_cselect_b32 s32, s16, s22\n s_cselect_b32 s33, s17, s23\n s_and_b32 s33, s33, 0xffff')
    a('s_lshl_b32 s6, s2, 3\n s_load_dwordx2 s[60:61], s[8:9], s6')
    srd(36, 28, 0x10000000 if diag else 0x200000); srd(40, 24, 2048)
    a('s_barrier')
    ldsspin(L_FB, 48); settag()
    for t in range(4):
        ks, hb = t >> 1, t & 1
        for j in range(8):
            r = 128 + 32 * t + 4 * j
            if j % 2 == 0: a(f's_mov_b32 s44, {(ks*32 + j) * 2048}')
            a(f'buffer_load_dwordx4 v[{r}:{r+3}], v{6 if ks else 3}, s[32:35], s44 offen offset:{(j&1)*2048 + hb*256} {nt_w}')
    TS(2)
    a(f's_lshl_b32 s6, s4, 17\n s_lshl_b32 s7, s5, 4\n s_add_u32 s6, s6, s7\n s_add_u32 s6, s6, s51\n s_add_u32 s6, s6, {FP}')
    a('v_lshrrev_b32 v7, 1, v2\n v_lshlrev_b32 v7, 4, v7\n v_add_u32 v7, v7, v1\n v_and_b32 v8, 1, v2\n v_lshl_add_u32 v7, v7, 1, v8\n v_lshl_add_u32 v7, v7, 11, s6')
    a('v_lshl_add_u32 v9, v2, 4, s52\n v_mov_b32 v10, s53')
    for t in range(3):
        for p in range(4):
            a(f's_waitcnt vmcnt({30 - 8*t - 2*p})')
            transpose_pair(128 + 32 * t, 96 + 32 * t, p)
    TS(3)
    l = L('sp'); d = L('sd')
    a(f's_mov_b32 s58, {SPIN}')
    a.label(l)
    a(f'ds_read_b32 v11, v10\n ds_read_b128 v[16:19], v9\n ds_read_b128 v[20:23], v9 offset:64\n s_waitcnt lgkmcnt(0)\n v_readfirstlane_b32 s59, v11')
    a(f's_nop 0\n s_cmp_lg_u32 s59, 0\n s_cbranch_scc1 {d}\n s_sleep 1\n s_sub_u32 s58, s58, 1\n s_cbranch_scc0 {l}')
    a.label(d)
    TS(4)
    for t in range(4):
        ks, hb = t >> 1, t & 1
        if t == 3:
            for p in range(4):
                a(f's_waitcnt vmcnt({6 - 2*p})')
                transpose_pair(128 + 32 * t, 96 + 32 * t, p)
        for i in range(8): mfma(32 + 32 * hb + 4 * i, 16 + 4 * ks, 96 + 32 * t + 4 * i, ks == 0)
    a('v_mov_b32 v12, s48')
    for kg in range(4):
        a(f's_mov_b32 exec_lo, {hex(0xffff << (16*kg) & 0xffffffff) if kg < 2 else 0}\n s_mov_b32 exec_hi, {hex(0xffff << (16*(kg-2))) if kg >= 2 else 0}')
        for c in range(4): a(f'v_bfi_b32 v{24+c}, s49, v{32 + 32*(kg>>1) + 4*((kg&1)*4 + c)}, v12')
    a(f's_mov_b64 exec, -1\n buffer_store_dwordx4 v[24:27], v7, s[36:39], 0 offen {st}')
    TS(5)
    a('s_cmp_eq_u32 s3, 4\n s_cbranch_scc0 Lfin')
    a(f's_lshl_b32 s6, s2, 11\n s_add_u32 s6, s6, {FP}\n v_lshl_add_u32 v3, v0, 4, s6')
    a('v_and_b32 v4, 1, v2\n v_cmp_eq_u32 vcc, 1, v4\n v_mov_b32 v5, s60\n v_mov_b32 v6, s61\n v_cndmask_b32 v5, v5, v6, vcc\n s_lshl_b32 s6, s2, 3\n v_lshl_add_u32 v4, v4, 2, s6')
    a('v_and_b32 v6, 0xffff0000, v5\n v_lshlrev_b32 v5, 16, v5')
    def lf(): a(f'buffer_load_dwordx4 v[32:35], v3, s[36:39], 0 offen {ld}\n buffer_load_dwordx4 v[36:39], v3, s[36:39], 0 offen offset:1024 {ld}')
    poll(lf, lambda: tagcheck(list(range(32, 40)), 8, 9, 10), 8)
    TS(6)
    for c in range(4): a(f'v_permlane32_swap_b32 v{32+c}, v{36+c}')
    for c in range(4): a(f'v_add_f32 v{32+c}, v{32+c}, v{36+c}')
    a('v_permlane16_swap_b32 v32, v34\n v_permlane16_swap_b32 v33, v35\n v_add_f32 v32, v32, v34\n v_add_f32 v33, v33, v35')
    for r in (8, 4, 2, 1):
        for c in range(2): a(f'v_add_f32_dpp v{32+c}, v{32+c}, v{32+c} row_ror:{r} row_mask:0xf bank_mask:0xf')
    a('v_cvt_pk_bf16_f32 v32, v32, v33\n v_mov_b32 v33, v32\n v_permlane32_swap_b32 v32, v33')
    a('v_lshlrev_b32 v34, 16, v32\n v_and_b32 v35, 0xffff0000, v32\n v_add_f32 v34, v34, v5\n v_add_f32 v35, v35, v6\n v_cvt_pk_bf16_f32 v32, v34, v35')
    a('v_lshlrev_b32 v34, 16, v32\n v_and_b32 v35, 0xffff0000, v32\n v_lshlrev_b32 v36, 16, v33\n v_and_b32 v37, 0xffff0000, v33')
    a('v_add_f32 v34, v34, v36\n v_add_f32 v35, v35, v37\n v_cvt_pk_bf16_f32 v32, v34, v35')
    a('s_mov_b64 exec, 0x10001\n buffer_store_dword v32, v4, s[40:43], 0 offen')
    a('s_cmp_eq_u32 s2, 0\n s_cbranch_scc0 Lfin\n s_mov_b64 exec, 1\n v_mov_b32 v4, 0\n buffer_store_dword v12, v4, s[36:39], 0 offen')
    a.label('Lfin')
    if diag:
        TS(15)
        a(f's_mov_b64 exec, 1\n s_mul_i32 s6, s2, 5\n s_add_u32 s6, s6, s3\n s_lshl_b32 s6, s6, 7\n s_add_u32 s6, s6, {TSB}\n v_mov_b32 v4, s6\n s_waitcnt lgkmcnt(0)')
        for i in range(8):
            for c in range(4): a(f'v_mov_b32 v{8+4*i+c}, s{64+4*i+c}')
            a(f'buffer_store_dwordx4 v[{8+4*i}:{11+4*i}], v4, s[36:39], 0 offen offset:{16*i}')
    a.label('Lend')
    a('s_endpgm')
    return wrap(a, 320, 2048)

def wrap(a, threads, lds, nv=256):
    hdr = open('cdna_kernels/' + NAME + '.s.ref').read().split('\n')
    top = [l for l in hdr if l.startswith(';') and '@launch' not in l][:14]
    s = '\n'.join(top) + f'\n; @launch grid=(256,1,1) block=({threads},1,1) lds={lds}\n'
    s += f'.amdgcn_target "amdgcn-amd-amdhsa--gfx950"\n.text\n.globl {NAME}_kernel\n.p2align 8\n.type {NAME}_kernel,@function\n{NAME}_kernel:\n'
    s += a.text()
    s += f'''.section .rodata,"a"
.p2align 6
.amdhsa_kernel {NAME}_kernel
  .amdhsa_next_free_vgpr {nv}
  .amdhsa_next_free_sgpr 102
  .amdhsa_accum_offset {nv}
  .amdhsa_group_segment_fixed_size 0
  .amdhsa_kernarg_size 88
  .amdhsa_user_sgpr_count 2
  .amdhsa_user_sgpr_kernarg_segment_ptr 1
  .amdhsa_system_sgpr_workgroup_id_x 1
.end_amdhsa_kernel
'''
    return s

if __name__ == '__main__':
    open('v1d.s', 'w').write(gen(diag=True))
    open('v1d_non.s', 'w').write(gen(diag=True, nt_w='', nt_k='', nt_v=''))
    open('v1.s', 'w').write(gen())
    open('v1_non.s', 'w').write(gen(nt_w='', nt_k='', nt_v=''))
    open('cdna_kernels/' + NAME + '.s', 'w').write(gen())
```

```python
import sys
from asmlib import Asm
NAME = "parallel_sum__sliding_block_cached__dense_activation_silu__decode"
QP, HP, OP, LP, FP, TSB = 0x1000, 0x11000, 0x20000, 0x120000, 0x130000, 0x8000000
L_FA, L_FB, L_FO, L_FH, L_XQ, L_X1, L_O, L_H = 0, 4, 8, 12, 64, 576, 1088, 1216
SPIN = 100000

def gen(diag=False, nt_w='nt', nt_k='nt', nt_v='nt', st='sc1', ld='sc1', slp=2, probe=None):
    a = Asm()
    uid = [0]
    def L(p):
        uid[0] += 1; return f'L{p}{uid[0]}'
    def TS(i):
        if diag: a(f's_memrealtime s[{64+2*i}:{65+2*i}]')
        if probe and probe[1] == i: a('s_memrealtime s[64:65]')
    def srd(d, b, size):
        a(f's_mov_b32 s{d}, s{b}\n s_and_b32 s{d+1}, s{b+1}, 0xffff\n s_mov_b32 s{d+2}, {size}\n s_mov_b32 s{d+3}, 0x20000')
    def xor16_32(v, t, op):
        for sw in ('v_permlane16_swap_b32', 'v_permlane32_swap_b32'):
            a(f'v_mov_b32 v{t}, v{v}\n {sw} v{v}, v{t}\n {op} v{v}, v{v}, v{t}')
    def rowred(v, op):
        for r in (8, 4, 2, 1):
            a(f'{op}_dpp v{v}, v{v}, v{v} row_ror:{r} row_mask:0xf bank_mask:0xf')
    def ldsspin(off, sdst, vt=4):
        l = L('sp'); d = L('sd')
        a(f's_mov_b32 s58, {SPIN}\n v_mov_b32 v{vt}, 0')
        a.label(l)
        a(f'ds_read_b32 v{vt+1}, v{vt} offset:{off}\n s_waitcnt lgkmcnt(0)\n v_readfirstlane_b32 s{sdst}, v{vt+1}')
        a(f's_nop 0\n s_cmp_lg_u32 s{sdst}, 0\n s_cbranch_scc1 {d}\n s_sleep 1\n s_sub_u32 s58, s58, 1\n s_cbranch_scc0 {l}')
        a.label(d)
    def ldsflag(off, src, vt=4):
        a(f'v_mov_b32 v{vt}, 0\n v_mov_b32 v{vt+1}, {src}\n s_waitcnt lgkmcnt(0)\n ds_write_b32 v{vt}, v{vt+1} offset:{off}')
    def settag():
        a('s_and_b32 s48, s48, 0xff\n s_mul_i32 s50, s48, 0x01010101\n s_mov_b32 s49, 0xffffff00')
    def tagcheck(regs, t0, t1, t2):
        prs = [(regs[i], regs[i+1]) for i in range(0, len(regs), 2)]
        a(f'v_bitop3_b32 v{t0}, v{prs[0][0]}, v{prs[0][1]}, s48 bitop3:0x7e')
        i = 1
        while i < len(prs):
            if i + 1 < len(prs):
                a(f'v_bitop3_b32 v{t1}, v{prs[i][0]}, v{prs[i][1]}, s48 bitop3:0x7e')
                a(f'v_bitop3_b32 v{t2}, v{prs[i+1][0]}, v{prs[i+1][1]}, s48 bitop3:0x7e')
                a(f'v_or3_b32 v{t0}, v{t0}, v{t1}, v{t2}'); i += 2
            else:
                a(f'v_bitop3_b32 v{t1}, v{prs[i][0]}, v{prs[i][1]}, s48 bitop3:0x7e')
                a(f'v_or_b32 v{t0}, v{t0}, v{t1}'); i += 1
        a(f'v_and_b32 v{t0}, 0xff, v{t0}')
    def poll(loads, check, res):
        l = L('pl'); d = L('pd')
        a(f's_mov_b32 s58, {SPIN}')
        a.label(l)
        loads()
        a('s_waitcnt vmcnt(0)')
        check()
        a(f'v_cmp_ne_u32 vcc, 0, v{res}\n s_cbranch_vccz {d}\n s_sleep {slp}\n s_sub_u32 s58, s58, 1\n s_cbranch_scc0 {l}')
        a.label(d)
    def transpose_pair(src, dst, p):
        for c in range(4):
            a(f'v_perm_b32 v{dst+8*c+p}, v{src+8*p+4+c}, v{src+8*p+c}, s46')
            a(f'v_perm_b32 v{dst+8*c+4+p}, v{src+8*p+4+c}, v{src+8*p+c}, s47')
    def mfma(d, A, B, first):
        a(f'v_mfma_f32_16x16x32_bf16 v[{d}:{d+3}], v[{A}:{A+3}], v[{B}:{B+3}], ' + ('0' if first else f'v[{d}:{d+3}]'))

    a('s_cmp_ge_u32 s2, 256\n s_cbranch_scc1 Lend')
    a('s_load_dwordx16 s[8:23], s[0:1], 0\n s_load_dwordx4 s[24:27], s[0:1], 64\n s_load_dwordx2 s[28:29], s[0:1], 80')
    if diag:
        for i in range(64, 96): a(f's_mov_b32 s{i}, 0')
    TS(0)
    a('v_lshrrev_b32 v1, 6, v0\n v_and_b32 v0, 63, v0\n v_readfirstlane_b32 s3, v1\n v_and_b32 v1, 15, v0\n v_lshrrev_b32 v2, 4, v0')
    a('s_mov_b32 s46, 0x05040100\n s_mov_b32 s47, 0x07060302\n s_and_b32 s4, s2, 3\n s_lshr_b32 s5, s2, 2')
    a('s_cmp_eq_u32 s3, 1\n s_cbranch_scc1 Lattn\n s_cmp_ge_u32 s3, 3\n s_cbranch_scc1 Lgb')
    a('v_lshrrev_b32 v3, 3, v1\n v_lshlrev_b32 v3, 2, v3\n v_add_u32 v3, v3, v2\n v_lshlrev_b32 v3, 3, v3')
    a('s_lshl_b32 s6, s4, 8\n v_add_u32 v3, s6, v3\n v_and_b32 v4, 7, v1\n v_lshlrev_b32 v4, 4, v4\n s_lshl_b32 s7, s5, 7\n v_add_u32 v4, s7, v4')
    a('v_lshlrev_b32 v5, 5, v0\n s_lshl_b32 s6, s4, 9\n v_lshl_add_u32 v6, v0, 3, s6')
    a('s_cmp_eq_u32 s3, 0\n s_mov_b32 s45, 7168\n s_cmov_b32 s45, 8192\n v_mad_u32_u24 v3, v3, s45, v4')
    a(f's_mov_b32 s34, 7340032\n s_cmov_b32 s34, 8388608\n s_mov_b32 s51, {HP}\n s_cmov_b32 s51, {QP}\n s_cselect_b32 s52, {L_XQ}, {L_X1}\n s_mov_b32 s35, 0x20000')
    a('s_waitcnt lgkmcnt(0)')
    TS(1)
    a('s_cselect_b32 s32, s14, s20\n s_cselect_b32 s33, s15, s21\n s_and_b32 s33, s33, 0xffff')
    srd(40, 8, 2048)
    a('buffer_load_dwordx4 v[8:11], v5, s[40:43], 0 offen\n buffer_load_dwordx4 v[12:15], v5, s[40:43], 0 offen offset:16\n buffer_load_dwordx2 v[16:17], v6, s[40:43], 0 offen')
    srd(36, 28, 0x10000000 if diag else 0x200000)
    a('s_cmp_eq_u32 s3, 0\n s_cbranch_scc1 Lga_go')
    a('s_barrier')
    ldsspin(L_FA, 48)
    a('s_cmp_ge_u32 s2, 224\n s_cbranch_scc0 Lga_go')
    ldsflag(L_FB, 's48'); settag()
    a('s_branch Lhgather')
    a.label('Lga_go')
    a('s_mov_b32 s44, 0\n s_mul_i32 s53, s45, 57')
    for t in range(4):
        for j in range(8):
            r = 128 + 32 * t + 4 * j
            a(f'buffer_load_dwordx4 v[{r}:{r+3}], v3, s[32:35], s44 offen {nt_w}')
            if (t, j) != (3, 7): a(f's_add_u32 s44, s44, {"s53" if j == 7 else "s45"}')
    TS(2)
    a('s_cmp_eq_u32 s3, 0\n s_cbranch_scc0 Lga_1')
    a('v_mov_b32 v20, 0\n v_mov_b32 v21, 0\n v_mov_b32 v22, 0\n v_mov_b32 v23, 0\n v_mov_b32 v4, 0\n ds_write_b128 v4, v[20:23]\n s_waitcnt lgkmcnt(0)\n s_barrier\n s_branch Lga_ln')
    a.label('Lga_1')
    ldsflag(L_FB, 's48')
    a.label('Lga_ln')
    a('s_waitcnt vmcnt(32)')
    TS(3)
    for i in range(8):
        a(f'v_lshlrev_b32 v{20+2*i}, 16, v{8+i}\n v_and_b32 v{21+2*i}, 0xffff0000, v{8+i}')
    a('v_add_f32 v36, v20, v21')
    for i in range(22, 36): a(f'v_add_f32 v36, v36, v{i}')
    rowred(36, 'v_add_f32'); xor16_32(36, 37, 'v_add_f32')
    a('v_mul_f32 v36, 0x3a800000, v36')
    for i in range(20, 36): a(f'v_sub_f32 v{i}, v{i}, v36')
    a('v_mul_f32 v38, v20, v20')
    for i in range(21, 36): a(f'v_fmac_f32 v38, v{i}, v{i}')
    rowred(38, 'v_add_f32'); xor16_32(38, 37, 'v_add_f32')
    a('v_mul_f32 v38, 0x3a800000, v38\n v_cvt_pk_bf16_f32 v36, v36, v38')
    a('v_and_b32 v38, 0xffff0000, v36\n v_lshlrev_b32 v36, 16, v36\n v_add_f32 v38, 0x3727c5ac, v38')
    a('v_cvt_pk_bf16_f32 v38, v38, v38\n v_lshlrev_b32 v38, 16, v38\n v_sqrt_f32 v38, v38\n v_cvt_pk_bf16_f32 v38, v38, v38\n v_lshlrev_b32 v38, 16, v38\n v_rcp_f32 v38, v38')
    a('v_lshlrev_b32 v20, 16, v16\n v_and_b32 v21, 0xffff0000, v16\n v_lshlrev_b32 v22, 16, v17\n v_and_b32 v23, 0xffff0000, v17')
    for i in range(20, 24): a(f'v_sub_f32 v{i}, v{i}, v36')
    a('v_cvt_pk_bf16_f32 v16, v20, v21\n v_cvt_pk_bf16_f32 v17, v22, v23')
    a('v_lshlrev_b32 v20, 16, v16\n v_and_b32 v21, 0xffff0000, v16\n v_lshlrev_b32 v22, 16, v17\n v_and_b32 v23, 0xffff0000, v17')
    for i in range(20, 24): a(f'v_mul_f32 v{i}, v{i}, v38')
    a('v_cvt_pk_bf16_f32 v16, v20, v21\n v_cvt_pk_bf16_f32 v17, v22, v23')
    a('v_lshl_add_u32 v4, v0, 3, s52\n ds_write_b64 v4, v[16:17]')
    a('v_and_b32 v5, 1, v0\n v_lshlrev_b32 v5, 2, v5\n v_add_u32 v5, v5, v2\n v_lshl_add_u32 v5, v5, 4, s52\n s_waitcnt lgkmcnt(0)')
    for t in range(4): a(f'ds_read_b128 v[{40+4*t}:{43+4*t}], v5 offset:{128*t}')
    TS(4)
    for t in range(4):
        for p in range(4):
            a(f's_waitcnt vmcnt({30 - 8*t - 2*p})')
            transpose_pair(128 + 32 * t, 96 + 32 * t, p)
        if t == 0: a('s_waitcnt lgkmcnt(0)')
        for i in range(8): mfma(56 + 4 * i, 40 + 4 * t, 96 + 32 * t + 4 * i, t == 0)
    TS(5)
    ldsspin(L_FA, 48); settag()
    for i in range(8): a(f'v_add_f32_dpp v{20+i}, v{57+4*i}, v{56+4*i} row_ror:8 row_mask:0xf bank_mask:0xf')
    a('v_cmp_eq_u32 vcc, 1, v2\n v_mov_b32 v7, s48')
    for c in range(4): a(f'v_cndmask_b32 v{20+c}, v{20+c}, v{24+c}, vcc')
    for c in range(4): a(f'v_bfi_b32 v{20+c}, s49, v{20+c}, v7')
    a('v_lshrrev_b32 v4, 2, v1\n v_lshl_add_u32 v4, v4, 1, v2\n v_and_b32 v5, 3, v1\n v_lshl_add_u32 v4, v4, 2, v5\n s_lshl_b32 s6, s2, 8\n s_add_u32 s6, s6, s51\n v_lshl_add_u32 v4, v4, 4, s6')
    a(f's_mov_b64 exec, 0x00ff00ff\n buffer_store_dwordx4 v[20:23], v4, s[36:39], 0 offen {st}\n s_mov_b64 exec, -1')
    TS(6)
    a('s_cmp_eq_u32 s3, 0\n s_cbranch_scc0 Lhgather')
    a(f's_lshl_b32 s6, s5, 14\n s_add_u32 s6, s6, {OP}\n v_lshlrev_b32 v3, 12, v2\n v_lshl_add_u32 v3, v1, 4, v3\n v_add_u32 v3, s6, v3')
    a(f's_lshr_b32 s6, s5, 1\n s_lshl_b32 s6, s6, 10\n s_add_u32 s6, s6, {LP}\n v_lshl_add_u32 v5, v0, 4, s6')
    def lo1(): a(f'buffer_load_dwordx4 v[8:11], v5, s[36:39], 0 offen {ld}')
    poll(lo1, lambda: a('v_xor_b32 v12, s50, v10'), 12)
    TS(7)
    def lo2():
        for u in range(16): a(f'buffer_load_dwordx4 v[{128+4*u}:{131+4*u}], v3, s[36:39], 0 offen offset:{256*u} {ld}')
    first = [True]
    poll(lo2, lambda: tagcheck(list(range(128, 192)), 12, 13, 14), 12)
    TS(8)
    a('v_mov_b32 v12, v8'); rowred(12, 'v_max_f32'); xor16_32(12, 13, 'v_max_f32')
    a('v_sub_f32 v8, v8, v12\n v_exp_f32 v8, v8\n v_mul_f32 v9, v8, v9')
    for c in range(4): a(f'v_mul_f32_dpp v{20+c}, v8, v{128+c} row_newbcast:0 row_mask:0xf bank_mask:0xf')
    for u in range(1, 16):
        for c in range(4): a(f'v_fmac_f32_dpp v{20+c}, v8, v{128+4*u+c} row_newbcast:{u} row_mask:0xf bank_mask:0xf')
    rowred(9, 'v_add_f32'); xor16_32(9, 13, 'v_add_f32')
    a('v_rcp_f32 v9, v9')
    for c in range(4): xor16_32(20 + c, 24 + c, 'v_add_f32')
    for c in range(4): a(f'v_mul_f32 v{20+c}, v{20+c}, v9')
    a('v_cvt_pk_bf16_f32 v20, v20, v21\n v_cvt_pk_bf16_f32 v21, v22, v23')
    a('v_and_b32 v4, 3, v1\n v_lshlrev_b32 v4, 5, v4\n v_lshrrev_b32 v5, 3, v1\n v_lshl_add_u32 v4, v5, 4, v4\n v_bfe_u32 v5, v1, 2, 1\n v_lshl_add_u32 v4, v5, 3, v4')
    a(f'ds_write_b64 v4, v[20:21] offset:{L_O}')
    ldsflag(L_FO, '1')
    TS(9)
    a('s_branch Lfin')
    a.label('Lhgather')
    a('v_min_u32 v4, 13, v1\n s_mul_i32 s6, s5, 14\n v_add_u32 v4, s6, v4')
    a('v_lshrrev_b32 v5, 4, v4\n v_lshl_add_u32 v5, v5, 2, v2\n v_lshlrev_b32 v5, 8, v5')
    a('v_bfe_u32 v6, v4, 3, 1\n v_lshl_add_u32 v5, v6, 7, v5\n v_and_b32 v6, 1, v4\n v_lshl_add_u32 v5, v6, 6, v5\n v_bfe_u32 v6, v4, 1, 2\n v_lshl_add_u32 v5, v6, 4, v5')
    a(f'v_add_u32 v5, {HP}, v5')
    def lh(): a(f'buffer_load_dwordx4 v[8:11], v5, s[36:39], 0 offen {ld}')
    poll(lh, lambda: tagcheck([8, 9, 10, 11], 12, 13, 14), 12)
    TS(8)
    for c in range(4): xor16_32(8 + c, 12 + c, 'v_add_f32')
    a('v_cvt_pk_bf16_f32 v8, v8, v9\n v_cvt_pk_bf16_f32 v10, v10, v11')
    a('v_and_b32 v9, 0xffff0000, v8\n v_lshlrev_b32 v8, 16, v8\n v_and_b32 v11, 0xffff0000, v10\n v_lshlrev_b32 v10, 16, v10')
    for c in range(4): a(f'v_mul_f32 v{12+c}, 0xbfb8aa3b, v{8+c}')
    for c in range(4): a(f'v_exp_f32 v{12+c}, v{12+c}')
    for c in range(4): a(f'v_add_f32 v{12+c}, 1.0, v{12+c}')
    for c in range(4): a(f'v_rcp_f32 v{12+c}, v{12+c}')
    for c in range(4): a(f'v_mul_f32 v{8+c}, v{8+c}, v{12+c}')
    a('v_cvt_pk_bf16_f32 v8, v8, v9\n v_cvt_pk_bf16_f32 v9, v10, v11\n v_cmp_gt_u32 vcc, 14, v1\n v_cndmask_b32 v8, 0, v8, vcc\n v_cndmask_b32 v9, 0, v9, vcc')
    a(f'v_lshlrev_b32 v4, 3, v1\n ds_write_b64 v4, v[8:9] offset:{L_H}')
    ldsflag(L_FH, '1')
    TS(9)
    a('s_branch Lfin')

    a.label('Lattn')
    a('s_lshr_b32 s6, s2, 6\n s_and_b32 s7, s2, 63')
    a('s_lshl_b32 s44, s6, 24\n s_lshl_b32 s45, s7, 14\n s_add_u32 s44, s44, s45\n s_add_u32 s44, s44, 15728640')
    a('v_lshlrev_b32 v3, 8, v1\n v_lshl_add_u32 v3, v2, 4, v3')
    a('v_bfe_u32 v4, v1, 1, 1\n v_lshlrev_b32 v5, 7, v4\n v_lshrrev_b32 v4, 2, v1\n v_lshl_add_u32 v5, v4, 5, v5\n v_and_b32 v4, 1, v1\n v_lshl_add_u32 v5, v4, 4, v5\n v_lshl_add_u32 v5, v2, 10, v5')
    a('s_waitcnt lgkmcnt(0)')
    TS(1)
    a('s_load_dword s48, s[28:29], 0')
    srd(32, 10, 67108864); srd(40, 12, 67108864); srd(36, 28, 0x10000000 if diag else 0x200000)
    a('s_add_u32 s45, s44, 4096\n s_add_u32 s52, s44, 8192\n s_add_u32 s53, s44, 12288')
    so = ['s44', 's45', 's52', 's53']
    a('s_barrier')
    for T in range(4):
        for ks in range(4):
            r = 128 + (T * 4 + ks) * 4
            a(f'buffer_load_dwordx4 v[{r}:{r+3}], v3, s[32:35], {so[T]} offen offset:{64*ks} {nt_k}')
    for p in range(2):
        for j in range(8):
            r = 192 + p * 32 + j * 4
            a(f'buffer_load_dwordx4 v[{r}:{r+3}], v5, s[40:43], {so[2*p + (j>>2)]} offen offset:{256*(j&3)} {nt_v}')
    a('s_waitcnt lgkmcnt(0)\n s_add_u32 s48, s48, 1\n s_or_b32 s48, s48, 0x100')
    ldsflag(L_FA, 's48', 6); settag()
    TS(2)
    a(f's_lshl_b32 s54, s6, 14\n s_add_u32 s54, s54, {QP}\n v_and_b32 v4, 7, v1\n v_lshlrev_b32 v3, 11, v4\n v_lshrrev_b32 v6, 3, v1\n v_lshl_add_u32 v3, v6, 9, v3\n v_lshl_add_u32 v3, v2, 4, v3\n v_add_u32 v3, s54, v3')
    a(f's_lshl_b32 s54, s6, 18\n s_lshl_b32 s55, s7, 8\n s_add_u32 s54, s54, s55\n s_add_u32 s54, s54, {OP}\n v_lshlrev_b32 v5, 15, v4\n v_lshl_add_u32 v5, v6, 6, v5\n v_lshl_add_u32 v5, v2, 4, v5\n v_add_u32 v5, s54, v5')
    a(f's_lshl_b32 s54, s6, 13\n s_lshl_b32 s55, s7, 4\n s_add_u32 s54, s54, s55\n s_add_u32 s54, s54, {LP}\n v_lshl_add_u32 v7, v4, 10, s54\n s_movk_i32 s55, 0x4000')
    for p in range(2):
        for q in range(4):
            a(f's_waitcnt vmcnt({14 - 8*p - 2*q})')
            transpose_pair(192 + 32 * p, 96 if p == 0 else 192, q)
    VT = [96, 192]
    TS(3)
    def lq():
        for ks in range(4):
            for gh in range(2):
                for k1 in range(2):
                    r = 32 + ((ks * 2 + gh) * 2 + k1) * 4
                    a(f'buffer_load_dwordx4 v[{r}:{r+3}], v3, s[36:39], 0 offen offset:{(ks>>1)*1024 + k1*256 + (ks&1)*128 + gh*64} {ld}')
    poll(lq, lambda: tagcheck(list(range(32, 96)), 8, 9, 10), 8)
    TS(4)
    for e in range(8):
        for c in range(4): a(f'v_add_f32 v{32+8*e+c}, v{32+8*e+c}, v{36+8*e+c}')
    for e in range(8):
        for c in range(4): a(f'v_add_f32_dpp v{32+8*e+c}, v{32+8*e+c}, v{32+8*e+c} row_ror:8 row_mask:0xf bank_mask:0xf')
    for e in range(8):
        a(f'v_cvt_pk_bf16_f32 v{16+2*e}, v{32+8*e}, v{33+8*e}\n v_cvt_pk_bf16_f32 v{17+2*e}, v{34+8*e}, v{35+8*e}')
    for ks in range(4):
        for T in range(4): mfma(32 + 4 * T, 128 + (T * 4 + ks) * 4, 16 + 4 * ks, ks == 0)
    a('s_mov_b32 s56, 0x3db504f3\n s_mov_b32 s57, 0x3fb8aa3b')
    for e in range(8): a(f'v_cvt_pk_bf16_f32 v{48+e}, v{32+2*e}, v{33+2*e}')
    for e in range(8): a(f'v_lshlrev_b32 v{32+2*e}, 16, v{48+e}\n v_and_b32 v{33+2*e}, 0xffff0000, v{48+e}')
    for e in range(16): a(f'v_mul_f32 v{32+e}, s56, v{32+e}')
    for e in range(8): a(f'v_cvt_pk_bf16_f32 v{48+e}, v{32+2*e}, v{33+2*e}')
    for e in range(8): a(f'v_lshlrev_b32 v{32+2*e}, 16, v{48+e}\n v_and_b32 v{33+2*e}, 0xffff0000, v{48+e}')
    a('v_max_f32 v8, v32, v33')
    for e in range(1, 8): a(f'v_max3_f32 v8, v8, v{32+2*e}, v{33+2*e}')
    xor16_32(8, 9, 'v_max_f32')
    a('v_mul_f32 v8, s57, v8')
    for e in range(16): a(f'v_fma_f32 v{32+e}, v{32+e}, s57, -v8')
    for e in range(16): a(f'v_exp_f32 v{32+e}, v{32+e}')
    for e in range(8): a(f'v_cvt_pk_bf16_f32 v{48+e}, v{32+2*e}, v{33+2*e}')
    for p in range(2):
        for i in range(8): mfma(224 + 4 * i, VT[p] + 4 * i, 48 + 4 * p, p == 0)
    a('v_add_f32 v9, v32, v33')
    for e in range(2, 16): a(f'v_add_f32 v9, v9, v{32+e}')
    xor16_32(9, 12, 'v_add_f32')
    a('v_mov_b32 v10, s50\n v_mov_b32 v11, s50\n v_cmp_lt_u32 vcc, 7, v1\n v_mov_b32 v12, s48')
    for r in range(4):
        for c in range(4): a(f'v_cndmask_b32 v{64+4*r+c}, v{224+4*c+r}, v{240+4*c+r}, vcc')
        for c in range(4): a(f'v_bfi_b32 v{64+4*r+c}, s49, v{64+4*r+c}, v12')
        a(f'buffer_store_dwordx4 v[{64+4*r}:{67+4*r}], v5, s[36:39], {"s55" if r >= 2 else "0"} offen offset:{128*(r&1)} {st}')
    a(f's_mov_b64 exec, 0xff\n buffer_store_dwordx4 v[8:11], v7, s[36:39], 0 offen {st}\n s_mov_b64 exec, -1')
    TS(5)
    a('s_branch Lfin')

    a.label('Lgb')
    a('s_cmp_eq_u32 s3, 4\n s_cselect_b32 s6, 64, 56\n s_mul_i32 s6, s6, s5\n s_lshl_b32 s6, s6, 11\n s_lshl_b32 s7, s4, 9\n s_add_u32 s6, s6, s7')
    a('v_lshlrev_b32 v3, 14, v2\n v_lshl_add_u32 v3, v1, 4, v3\n v_add_u32 v3, s6, v3')
    a('s_cmp_eq_u32 s3, 4\n s_cselect_b32 s7, 4, 3\n v_cmp_eq_u32 vcc, s7, v2\n v_mov_b32 v6, 0x7f000000\n v_cndmask_b32 v6, v3, v6, vcc')
    a(f's_mov_b32 s34, 7340032\n s_cmov_b32 s34, 8388608\n s_mov_b32 s35, 0x20000\n s_mov_b32 s52, {L_H}\n s_cmov_b32 s52, {L_O}\n s_cselect_b32 s53, {L_FO}, {L_FH}\n s_cselect_b32 s51, 0, 1024')
    a('s_waitcnt lgkmcnt(0)')
    TS(1)
    a('s_cselect_b32 s32, s16, s22\n s_cselect_b32 s33, s17, s23\n s_and_b32 s33, s33, 0xffff')
    a('s_lshl_b32 s6, s2, 3\n s_load_dwordx2 s[60:61], s[8:9], s6')
    srd(36, 28, 0x10000000 if diag else 0x200000); srd(40, 24, 2048)
    a('s_barrier')
    ldsspin(L_FB, 48); settag()
    for t in range(4):
        ks, hb = t >> 1, t & 1
        for j in range(8):
            r = 128 + 32 * t + 4 * j
            if j % 2 == 0: a(f's_mov_b32 s44, {(ks*32 + j) * 2048}')
            a(f'buffer_load_dwordx4 v[{r}:{r+3}], v{6 if ks else 3}, s[32:35], s44 offen offset:{(j&1)*2048 + hb*256} {nt_w}')
    TS(2)
    a(f's_lshl_b32 s6, s4, 17\n s_lshl_b32 s7, s5, 4\n s_add_u32 s6, s6, s7\n s_add_u32 s6, s6, s51\n s_add_u32 s6, s6, {FP}')
    a('v_lshrrev_b32 v7, 1, v2\n v_lshlrev_b32 v7, 4, v7\n v_add_u32 v7, v7, v1\n v_and_b32 v8, 1, v2\n v_lshl_add_u32 v7, v7, 1, v8\n v_lshl_add_u32 v7, v7, 11, s6')
    a('v_lshl_add_u32 v9, v2, 4, s52\n v_mov_b32 v10, s53')
    for t in range(3):
        for p in range(4):
            a(f's_waitcnt vmcnt({30 - 8*t - 2*p})')
            transpose_pair(128 + 32 * t, 96 + 32 * t, p)
    TS(3)
    l = L('sp'); d = L('sd')
    a(f's_mov_b32 s58, {SPIN}')
    a.label(l)
    a(f'ds_read_b32 v11, v10\n ds_read_b128 v[16:19], v9\n ds_read_b128 v[20:23], v9 offset:64\n s_waitcnt lgkmcnt(0)\n v_readfirstlane_b32 s59, v11')
    a(f's_nop 0\n s_cmp_lg_u32 s59, 0\n s_cbranch_scc1 {d}\n s_sleep 1\n s_sub_u32 s58, s58, 1\n s_cbranch_scc0 {l}')
    a.label(d)
    TS(4)
    for t in range(4):
        ks, hb = t >> 1, t & 1
        if t == 3:
            for p in range(4):
                a(f's_waitcnt vmcnt({6 - 2*p})')
                transpose_pair(128 + 32 * t, 96 + 32 * t, p)
        for i in range(8): mfma(32 + 32 * hb + 4 * i, 16 + 4 * ks, 96 + 32 * t + 4 * i, ks == 0)
    a('v_mov_b32 v12, s48')
    for kg in range(4):
        a(f's_mov_b32 exec_lo, {hex(0xffff << (16*kg) & 0xffffffff) if kg < 2 else 0}\n s_mov_b32 exec_hi, {hex(0xffff << (16*(kg-2))) if kg >= 2 else 0}')
        for c in range(4): a(f'v_bfi_b32 v{24+c}, s49, v{32 + 32*(kg>>1) + 4*((kg&1)*4 + c)}, v12')
    a(f's_mov_b64 exec, -1\n buffer_store_dwordx4 v[24:27], v7, s[36:39], 0 offen {st}')
    TS(5)
    a('s_cmp_eq_u32 s3, 4\n s_cbranch_scc0 Lfin')
    a(f's_lshl_b32 s6, s2, 11\n s_add_u32 s6, s6, {FP}\n v_lshl_add_u32 v3, v0, 4, s6')
    a('v_and_b32 v4, 1, v2\n v_cmp_eq_u32 vcc, 1, v4\n v_mov_b32 v5, s60\n v_mov_b32 v6, s61\n v_cndmask_b32 v5, v5, v6, vcc\n s_lshl_b32 s6, s2, 3\n v_lshl_add_u32 v4, v4, 2, s6')
    a('v_and_b32 v6, 0xffff0000, v5\n v_lshlrev_b32 v5, 16, v5')
    def lf(): a(f'buffer_load_dwordx4 v[32:35], v3, s[36:39], 0 offen {ld}\n buffer_load_dwordx4 v[36:39], v3, s[36:39], 0 offen offset:1024 {ld}')
    poll(lf, lambda: tagcheck(list(range(32, 40)), 8, 9, 10), 8)
    TS(6)
    for c in range(4): a(f'v_permlane32_swap_b32 v{32+c}, v{36+c}')
    for c in range(4): a(f'v_add_f32 v{32+c}, v{32+c}, v{36+c}')
    a('v_permlane16_swap_b32 v32, v34\n v_permlane16_swap_b32 v33, v35\n v_add_f32 v32, v32, v34\n v_add_f32 v33, v33, v35')
    for r in (8, 4, 2, 1):
        for c in range(2): a(f'v_add_f32_dpp v{32+c}, v{32+c}, v{32+c} row_ror:{r} row_mask:0xf bank_mask:0xf')
    a('v_cvt_pk_bf16_f32 v32, v32, v33\n v_mov_b32 v33, v32\n v_permlane32_swap_b32 v32, v33')
    a('v_lshlrev_b32 v34, 16, v32\n v_and_b32 v35, 0xffff0000, v32\n v_add_f32 v34, v34, v5\n v_add_f32 v35, v35, v6\n v_cvt_pk_bf16_f32 v32, v34, v35')
    a('v_lshlrev_b32 v34, 16, v32\n v_and_b32 v35, 0xffff0000, v32\n v_lshlrev_b32 v36, 16, v33\n v_and_b32 v37, 0xffff0000, v33')
    a('v_add_f32 v34, v34, v36\n v_add_f32 v35, v35, v37\n v_cvt_pk_bf16_f32 v32, v34, v35')
    a('s_mov_b64 exec, 0x10001\n buffer_store_dword v32, v4, s[40:43], 0 offen')
    a('s_cmp_eq_u32 s2, 0\n s_cbranch_scc0 Lfin\n s_mov_b64 exec, 1\n v_mov_b32 v4, 0\n buffer_store_dword v12, v4, s[36:39], 0 offen')
    a.label('Lfin')
    if diag:
        TS(15)
        a(f's_mov_b64 exec, 1\n s_mul_i32 s6, s2, 5\n s_add_u32 s6, s6, s3\n s_lshl_b32 s6, s6, 7\n s_add_u32 s6, s6, {TSB}\n v_mov_b32 v4, s6\n s_waitcnt lgkmcnt(0)')
        for i in range(8):
            for c in range(4): a(f'v_mov_b32 v{8+4*i+c}, s{64+4*i+c}')
            a(f'buffer_store_dwordx4 v[{8+4*i}:{11+4*i}], v4, s[36:39], 0 offen offset:{16*i}')
    if probe:
        TS(15)
        a(f's_cmp_eq_u32 s3, {probe[0]}\n s_cbranch_scc0 Lend\n s_waitcnt lgkmcnt(0)\n s_mov_b32 s58, 100000')
        a.label('Lpr')
        a('s_memrealtime s[66:67]\n s_waitcnt lgkmcnt(0)\n s_sub_u32 s66, s66, s64\n s_cmp_ge_u32 s66, 3000\n s_cbranch_scc1 Lend\n s_sleep 1\n s_sub_u32 s58, s58, 1\n s_cbranch_scc0 Lpr')
    a.label('Lend')
    a('s_endpgm')
    return wrap(a, 320, 2048)

def wrap(a, threads, lds, nv=256):
    hdr = open('cdna_kernels/' + NAME + '.s.ref').read().split('\n')
    top = [l for l in hdr if l.startswith(';') and '@launch' not in l][:14]
    s = '\n'.join(top) + f'\n; @launch grid=(256,1,1) block=({threads},1,1) lds={lds}\n'
    s += f'.amdgcn_target "amdgcn-amd-amdhsa--gfx950"\n.text\n.globl {NAME}_kernel\n.p2align 8\n.type {NAME}_kernel,@function\n{NAME}_kernel:\n'
    s += a.text()
    s += f'''.section .rodata,"a"
.p2align 6
.amdhsa_kernel {NAME}_kernel
  .amdhsa_next_free_vgpr {nv}
  .amdhsa_next_free_sgpr 102
  .amdhsa_accum_offset {nv}
  .amdhsa_group_segment_fixed_size 0
  .amdhsa_kernarg_size 88
  .amdhsa_user_sgpr_count 2
  .amdhsa_user_sgpr_kernarg_segment_ptr 1
  .amdhsa_system_sgpr_workgroup_id_x 1
.end_amdhsa_kernel
'''
    return s

if __name__ == '__main__':
    open('v1d.s', 'w').write(gen(diag=True))
    open('v1d_non.s', 'w').write(gen(diag=True, nt_w='', nt_k='', nt_v=''))
    open('v1.s', 'w').write(gen())
    open('v1_non.s', 'w').write(gen(nt_w='', nt_k='', nt_v=''))
    for (w, e) in [(0,0),(0,1),(0,6),(1,3),(1,4),(1,5),(0,9),(4,3),(4,5),(4,15),(0,3),(0,5)]:
        open(f'p1_{w}_{e}.s', 'w').write(gen(probe=(w, e)))
```

```python
import sys
from asmlib import Asm
from gen1 import wrap, NAME
QP, HP, OP, LP, FP, TSB = 0x1000, 0x11000, 0x40000, 0x140000, 0x180000, 0x8000000
T_W2, T_WQ, T_K, T_V, T_W1, T_WO, MISC = 0, 28672, 61440, 77824, 94208, 126976, 159744
M_PROG, M_XN, M_QC, M_OC, M_HC, M_X, M_O, M_H, M_Q = 0, 4, 8, 12, 16, 64, 576, 704, 1024
M_AC = 20
M_GO = 28
SPIN = 100000
NW = 9

def gen(diag=False, W=lambda i: 24, nt='nt', slp=2, probe=None, lstride=64, old='sc1', qld='sc1', order='qkv12o', mask=True, sl_l=None, sl_h=None, sl_f=None, tq=48, to=132, th=116, allin=True, lld='sc1', ldb='sc1', stb='sc1', d_o=0, d_h=0, d_f=0, fboth=True, qe=False, fast=False, cut='', loc=False, x4='', pf=0, lnw=1, dry=False, un=4, seq=True, late=False, big=None, pause=None, cmb=None, fc=None, lag=None, lead=None, fl=0):
    a = Asm()
    uid = [0]
    def L(p):
        uid[0] += 1; return f'L{p}{uid[0]}'
    def TS(i):
        if diag: a(f's_memrealtime s[{64+2*i}:{65+2*i}]')
        if probe and probe[1] == i: a('s_memrealtime s[64:65]')
    def srd(d, b, size):
        a(f's_mov_b32 s{d}, s{b}\n s_and_b32 s{d+1}, s{b+1}, 0xffff\n s_mov_b32 s{d+2}, {size}\n s_mov_b32 s{d+3}, 0x20000')
    def xor16_32(v, t, op):
        for sw in ('v_permlane16_swap_b32', 'v_permlane32_swap_b32'):
            a(f'v_mov_b32 v{t}, v{v}\n {sw} v{v}, v{t}\n {op} v{v}, v{v}, v{t}')
    def dppred(v, op, rs):
        for r in rs: a(f'{op}_dpp v{v}, v{v}, v{v} row_ror:{r} row_mask:0xf bank_mask:0xf')
    def spin(addr, off, thr, extra=None, sl=True):
        l = L('sp'); d = L('sd')
        a(f's_mov_b32 s58, {SPIN}')
        a.label(l)
        a(f'ds_read_b32 v9, v{addr} offset:{off}')
        if extra: extra()
        a(f's_waitcnt lgkmcnt(0)\n v_readfirstlane_b32 s59, v9')
        a(f's_nop 0\n s_cmp_ge_u32 s59, {thr}\n s_cbranch_scc1 {d}\n {"s_sleep 1" if sl else ""}\n s_sub_u32 s58, s58, 1\n s_cbranch_scc0 {l}')
        a.label(d)
    def tagcheck(regs, t0, t1, t2):
        prs = [(regs[i], regs[i+1]) for i in range(0, len(regs), 2)]
        a(f'v_bitop3_b32 v{t0}, v{prs[0][0]}, v{prs[0][1]}, s48 bitop3:0x7e')
        i = 1
        while i < len(prs):
            if i + 1 < len(prs):
                a(f'v_bitop3_b32 v{t1}, v{prs[i][0]}, v{prs[i][1]}, s48 bitop3:0x7e')
                a(f'v_bitop3_b32 v{t2}, v{prs[i+1][0]}, v{prs[i+1][1]}, s48 bitop3:0x7e')
                a(f'v_or3_b32 v{t0}, v{t0}, v{t1}, v{t2}'); i += 2
            else:
                a(f'v_bitop3_b32 v{t1}, v{prs[i][0]}, v{prs[i][1]}, s48 bitop3:0x7e')
                a(f'v_or_b32 v{t0}, v{t0}, v{t1}'); i += 1
        a(f'v_and_b32 v{t0}, 0xff, v{t0}')
    def poll(loads, check, res, first='sc1', between=None, sl=None):
        l = L('pl'); d = L('pd')
        if first is not None: loads(ldb if first == 'sc1' else first)
        if between: between()
        a(f's_mov_b32 s58, {SPIN}')
        a.label(l)
        a('s_waitcnt vmcnt(0)')
        check()
        a(f'v_cmp_ne_u32 vcc, 0, v{res}\n s_cbranch_vccz {d}\n s_sleep {slp if sl is None else sl}')
        if mask: a('s_mov_b64 exec, vcc')
        loads(ldb)
        if mask: a('s_mov_b64 exec, -1')
        a(f's_sub_u32 s58, s58, 1\n s_cbranch_scc0 {l}')
        a.label(d)
    def mfma(d, A, B, first):
        a(f'v_mfma_f32_16x16x32_bf16 v[{d}:{d+3}], v[{A}:{A+3}], v[{B}:{B+3}], ' + ('0' if first else f'v[{d}:{d+3}]'))
    T = {'q': (3, 32, 32, T_WQ, 60, lambda i: 's97'), 'k': (4, 36, 16, T_K, 59, lambda i: 's98' if i & 1 else 's101'),
         'v': (4, 40, 16, T_V, 61, lambda i: 's98' if i & 1 else 's101'), '1': (5, 44, 32, T_W1, 62, lambda i: 's99'),
         '2': (6, 48, 28, T_W2, 63, lambda i: 's100' if i & 3 == 3 else 's101'), 'o': (6, 52, 32, T_WO, 31, lambda i: 's100' if i & 3 == 3 else 's101')}
    loads = []; EV = {'tq': tq} if fast else {'tq': tq, 'to': to, 'th': th}
    for c in order:
        v, s, n, base, so, inc = T[c]
        for i in range(n):
            loads.append((v, s, base if i == 0 else None, so, inc(i) if i < n - 1 else None))
            if c in 'o2' and i == 15: EV[c + '1'] = len(loads)
        if c != 'k' or (qe and tq < len(loads)): EV[c] = len(loads)
    WSZ = 0x10000000 if diag else 0x200000

    N0 = min(W(0), 32) // un * un
    a('s_load_dwordx2 s[32:33], s[0:1], 24\n s_load_dwordx2 s[40:41], s[0:1], 0\n v_cmp_gt_u32 vcc, 64, v0')
    a('s_load_dwordx16 s[8:23], s[0:1], 0\n s_load_dwordx2 s[24:25], s[0:1], 64\n s_load_dwordx2 s[28:29], s[0:1], 80')
    TS(0)
    a('s_cmp_ge_u32 s2, 256\n s_cbranch_scc1 Lend')
    def xblock():
        a('v_lshrrev_b32 v1, 6, v0\n v_and_b32 v0, 63, v0\n s_movk_i32 s42, 2048\n v_readfirstlane_b32 s3, v1\n s_mov_b32 s43, s35')
        a(f's_lshl_b32 s44, s4, 9\n v_lshlrev_b32 v5, 5, v0\n v_lshl_add_u32 v6, v0, 3, s44\n s_cmp_eq_u32 s3, {lnw}\n s_cbranch_scc0 Lnox\n s_waitcnt lgkmcnt(0)')
        a('buffer_load_dwordx4 v[12:15], v5, s[40:43], 0 offen\n buffer_load_dwordx4 v[16:19], v5, s[40:43], 0 offen offset:16\n buffer_load_dwordx2 v[20:21], v6, s[40:43], 0 offen')
    a('s_and_b32 s4, s2, 3\n s_mov_b32 s35, 0x20000')
    if seq:
        a('s_cbranch_vccnz Lld')
        xblock()
        a('s_branch Lnox')
        a.label('Lld')
    else: a('s_cbranch_vccz Lteam')
    a('v_lshrrev_b32 v1, 3, v0\n v_and_b32 v2, 6, v1\n v_and_b32 v3, 7, v0\n v_xor_b32 v2, v2, v3\n v_lshlrev_b32 v2, 4, v2\n v_lshl_add_u32 v3, v1, 13, v2')
    a(f's_lshr_b32 s5, s2, 2\n s_lshl_b32 s30, s5, 7\n s_lshl_b32 s60, s4, 21\n s_add_u32 s60, s60, s30\n s_lshl_b32 s34, s35, 6\n s_lshr_b32 s97, s35, 1\n s_movk_i32 s96, 1024\n s_movk_i32 m0, {T_WQ}\n s_movk_i32 s58, {N0 // un - 1}')
    a(f'v_mov_b32 v8, {MISC}\n v_mov_b32 v12, 0\n v_lshl_add_u32 v9, v0, 2, v8\n ds_write_b32 v9, v12')
    a('s_waitcnt lgkmcnt(0)')
    TS(1)
    a.label('Ll0')
    for k in range(un): a(f'buffer_load_dwordx4 v3, s[32:35], s60 offen {nt} lds\n s_add_u32 m0, m0, s96\n s_add_u32 s60, s60, s97')
    if un < N0: a('s_sub_u32 s58, s58, 1\n s_cbranch_scc0 Ll0')
    TS(8)
    a('s_barrier')
    if not seq: a('s_branch Lload')
    def ids():
        a('s_bfe_u32 s6, s2, 0x20001\n s_lshr_b32 s7, s2, 3\n s_lshl_b32 s7, s7, 1\n s_and_b32 s30, s2, 1\n s_add_u32 s7, s7, s30')
        a('s_lshr_b32 s26, s2, 5\n s_lshl_b32 s26, s26, 3\n s_and_b32 s30, s2, 7\n s_add_u32 s26, s26, s30\n s_bfe_u32 s27, s2, 0x20003')
    def loader2():
        a.label('Lload')
        a('s_mul_i32 s62, s4, 1835008\n s_add_u32 s62, s62, s30\n s_mov_b32 s3, 0')
        ids()
        a('s_movk_i32 s30, 7168\n v_lshl_add_u32 v4, v1, 8, v2\n v_mad_u32_u24 v5, v1, s30, v2\n v_lshl_add_u32 v6, v1, 11, v2')
        a('s_lshl_b32 s61, s6, 24\n s_lshl_b32 s30, s7, 14\n s_add_u32 s61, s61, s30\n s_add_u32 s61, s61, 15728640')
        a('s_lshl_b32 s30, s27, 9\n s_mul_i32 s63, s26, 114688\n s_add_u32 s63, s63, s30\n s_lshl_b32 s31, s26, 17\n s_add_u32 s31, s31, s30')
        a('s_movk_i32 s98, 1920\n s_mov_b32 s99, 57344\n s_movk_i32 s100, 16000\n s_movk_i32 s101, 128')
        srd(36, 10, 67108864); srd(40, 12, 67108864); srd(44, 20, 7340032); srd(48, 22, 7340032); srd(52, 16, 8388608)
        a('s_mov_b32 s59, s61\n s_cmp_ge_u32 s2, 224\n s_cselect_b32 s46, 0, s46')
        def run(i0, i1, W, pend, go):
            def setflag(landed):
                v = None
                while pend and pend[0] <= landed: v = pend.pop(0)
                if v is not None:
                    a(f'v_mov_b32 v9, {v}\n ds_write_b32 v8, v9 offset:{M_PROG}')
                g = None
                while go and go[0][0] <= landed: g = go.pop(0)[1]
                if isinstance(g, tuple) and len(g) > 2 and g[2] != g[0]: a(f's_cmp_ge_u32 s58, 4\n s_cselect_b32 s57, {g[0]}, {g[2]}\n s_cmp_ge_u32 s56, 4\n s_cselect_b32 s57, {g[1]}, s57\n v_mov_b32 v10, s57\n ds_write_b32 v8, v10 offset:{M_GO}')
                elif isinstance(g, tuple) and g[0] != g[1]: a(f's_cmp_ge_u32 s56, 4\n s_cselect_b32 s57, {g[1]}, {g[0]}\n v_mov_b32 v10, s57\n ds_write_b32 v8, v10 offset:{M_GO}')
                elif g is not None: a(f'v_mov_b32 v10, {g[0] if isinstance(g, tuple) else g}\n ds_write_b32 v8, v10 offset:{M_GO}')
                if v is not None:
                    for k, t in (('q', 2), ('v', 3), ('1', 4), ('2', 5), ('o1', 6), ('o', 7)):
                        if EV[k] == v: TS(t)
            for i in range(i0, i1):
                v, s, base, so, inc = loads[i]
                if i >= N0:
                    if base is not None: a(f's_mov_b32 m0, {base}\n s_nop 0')
                    a(f'buffer_load_dwordx4 v{v}, s[{s}:{s+3}], s{so} offen {nt} lds')
                    if inc: a(f's_add_u32 m0, m0, s96\n s_add_u32 s{so}, s{so}, {inc}')
                if big and i == big[0] - 1: a(f'ds_read_b32 v11, v8 offset:{M_QC}')
                if lag and i == lag[0] - 1: a(f'ds_read_b32 v11, v8 offset:{M_QC}')
                if lag and i == lag[0] + 1: a('s_waitcnt lgkmcnt(0)\n v_readfirstlane_b32 s56, v11')
                if lead and i == lead[0] - 1: a(f'ds_read_b32 v11, v8 offset:{M_QC}')
                if lead and i == lead[0] + 1: a('s_waitcnt lgkmcnt(0)\n v_readfirstlane_b32 s58, v11')
                if fl and i == (lead if fl == 1 else lag)[0] + 1: a('ds_write_b32 v8, v11 offset:24')
                if lag and len(lag) > 3 and i == lag[0] + 3: a('s_cmp_ge_u32 s56, 4\n s_cselect_b64 vcc, -1, 0')
                if lag and len(lag) > 3 and lag[3] <= i < len(loads) - 1:
                    ld = i + 1 - W(i)
                    if not ((pend and pend[0] <= ld) or (go and go[0][0] <= ld)):
                        l = L('sk'); a(f's_cbranch_vccnz {l}\n s_waitcnt vmcnt({W(i)})'); a.label(l)
                        continue
                    assert not (pend and pend[0] <= ld) and go[0][1][1] == 2
                    l = L('sk'); a(f's_cbranch_vccnz {l}\n s_waitcnt vmcnt({W(i)})'); setflag(ld); a.label(l)
                    continue
                if pause and i == pause - 1 and W(i) == W(0):
                    l = L('pa'); a(f's_mov_b32 s58, {SPIN}'); a.label(l)
                    a(f'ds_read_b32 v11, v8 offset:{M_QC}\n s_waitcnt lgkmcnt(0)\n v_readfirstlane_b32 s56, v11\n s_nop 0\n s_cmp_ge_u32 s56, 4\n s_cselect_b32 s58, 0, s58\n s_sub_u32 s58, s58, 1\n s_cbranch_scc0 {l}')
                if i + 1 > W(i):
                    a(f's_waitcnt vmcnt({W(i)})'); setflag(i + 1 - W(i))
                    if i == W(i): TS(9)
                    if diag and i == W(0) + 4:
                        for r in range(84, 96): a(f's_mov_b32 s{r}, 0')
            if i1 == len(loads):
                while pend or go:
                    c = min(pend[:1] + [x[0] for x in go[:1]])
                    a(f's_waitcnt vmcnt({len(loads) - c})'); setflag(c)
        pend = sorted(set(EV.values())); go = [(th, 1), (to, 2), (len(loads), 3)] if fast else []
        if lag:
            gv = lambda x, h, o: 3 if x >= len(loads) else 2 if x >= o else 1 if x >= h else 0
            go = [(x, (gv(x, th, to), gv(x, lag[2], lag[1]))) for x in sorted({th, to, lag[1], lag[2], len(loads)})]
        if lead:
            go = [(x, (gv(x, th, to), gv(x, lag[2], lag[1]), gv(x, lead[2], lead[1]))) for x in sorted({th, to, lag[1], lag[2], lead[1], lead[2], len(loads)})]
        if big:
            run(0, big[0], W, pend, go)
            a('s_waitcnt lgkmcnt(0)\n v_readfirstlane_b32 s56, v11\n s_nop 0\n s_cmp_ge_u32 s56, 4\n s_cbranch_scc1 Lbig')
            run(big[0], len(loads), W, list(pend), go)
            a('s_branch Lbige')
            a.label('Lbig')
            TS(10)
            run(big[0], len(loads), lambda i: big[1], list(pend), [(big[3], 1), (big[2], 2), (len(loads), 3)])
            a.label('Lbige')
        else: run(0, len(loads), W, pend, go)
        if diag: srd(36, 28, WSZ)
        a('s_waitcnt lgkmcnt(0)')

    if seq:
        loader2(); a('s_branch Lfin')
    a.label('Lteam')
    if not seq: xblock()
    a.label('Lnox')
    a('s_barrier')
    TS(1)
    if diag:
        for i in range(68, 96): a(f's_mov_b32 s{i}, 0')
    a(f'v_mov_b32 v8, {MISC}\n v_mov_b32 v11, 1\n s_waitcnt lgkmcnt(0)\n s_load_dword s48, s[28:29], 0')
    a('v_lshrrev_b32 v1, 3, v0\n v_lshl_add_u32 v125, v1, 6, v8\n v_and_b32 v1, 3, v0\n v_lshl_add_u32 v125, v1, 4, v125\n v_bfe_u32 v1, v0, 2, 1\n v_lshl_add_u32 v125, v1, 3, v125')
    if dry: a('s_and_b32 s44, s3, 6\n s_cbranch_scc1 Lnoln')
    else: a(f's_cmp_eq_u32 s3, {lnw}\n s_cbranch_scc0 Lnoln')
    a('s_waitcnt vmcnt(0)')
    TS(14)
    for i in range(8):
        a(f'v_lshlrev_b32 v{24+2*i}, 16, v{12+i}\n v_and_b32 v{25+2*i}, 0xffff0000, v{12+i}')
    a('v_add_f32 v40, v24, v25\n v_add_f32 v41, v26, v27')
    for i in range(28, 40, 2): a(f'v_add_f32 v40, v40, v{i}\n v_add_f32 v41, v41, v{i+1}')
    a('v_add_f32 v40, v40, v41')
    dppred(40, 'v_add_f32', (8, 4, 2, 1)); xor16_32(40, 41, 'v_add_f32')
    a('v_mul_f32 v40, 0x3a800000, v40')
    for i in range(24, 40): a(f'v_sub_f32 v{i}, v{i}, v40')
    a('v_mul_f32 v42, v24, v24\n v_mul_f32 v41, v25, v25')
    for i in range(26, 40, 2): a(f'v_fmac_f32 v42, v{i}, v{i}\n v_fmac_f32 v41, v{i+1}, v{i+1}')
    a('v_add_f32 v42, v42, v41')
    dppred(42, 'v_add_f32', (8, 4, 2, 1)); xor16_32(42, 41, 'v_add_f32')
    a('v_mul_f32 v42, 0x3a800000, v42\n v_cvt_pk_bf16_f32 v40, v40, v42')
    a('v_and_b32 v42, 0xffff0000, v40\n v_lshlrev_b32 v40, 16, v40\n v_add_f32 v42, 0x3727c5ac, v42')
    a('v_cvt_pk_bf16_f32 v42, v42, v42\n v_lshlrev_b32 v42, 16, v42\n v_sqrt_f32 v42, v42\n v_cvt_pk_bf16_f32 v42, v42, v42\n v_lshlrev_b32 v42, 16, v42\n v_rcp_f32 v42, v42')
    a('v_lshlrev_b32 v24, 16, v20\n v_and_b32 v25, 0xffff0000, v20\n v_lshlrev_b32 v26, 16, v21\n v_and_b32 v27, 0xffff0000, v21')
    for i in range(24, 28): a(f'v_sub_f32 v{i}, v{i}, v40')
    a('v_cvt_pk_bf16_f32 v22, v24, v25\n v_cvt_pk_bf16_f32 v23, v26, v27')
    a('v_lshlrev_b32 v24, 16, v22\n v_and_b32 v25, 0xffff0000, v22\n v_lshlrev_b32 v26, 16, v23\n v_and_b32 v27, 0xffff0000, v23')
    for i in range(24, 28): a(f'v_mul_f32 v{i}, v{i}, v42')
    a('v_cvt_pk_bf16_f32 v22, v24, v25\n v_cvt_pk_bf16_f32 v23, v26, v27')
    if dry: a('s_cmp_eq_u32 s3, 1\n s_cbranch_scc0 Lnoln')
    a(f'ds_write_b64 v125, v[22:23] offset:{M_X}\n ds_write_b32 v8, v11 offset:{M_XN}')
    a.label('Lnoln')
    a('s_lshr_b32 s5, s2, 2')
    ids()
    a('s_sub_u32 s31, s3, 1\n s_lshr_b32 s30, s31, 2\n s_and_b32 s31, s31, 3')
    a('v_and_b32 v1, 15, v0\n v_lshrrev_b32 v2, 4, v0')
    a('v_bfe_u32 v3, v0, 2, 3\n v_and_b32 v4, 6, v3\n v_bfe_u32 v5, v0, 1, 1\n v_xor_b32 v4, v4, v5\n v_lshlrev_b32 v3, 7, v3\n v_lshl_add_u32 v3, v4, 4, v3\n v_and_b32 v4, 1, v0\n v_lshl_add_u32 v3, v4, 3, v3\n v_lshrrev_b32 v4, 5, v0')
    a('v_and_b32 v5, 3, v0\n v_and_b32 v6, 1, v2\n v_lshlrev_b32 v6, 2, v6\n v_lshl_add_u32 v5, v5, 3, v6\n s_lshl_b32 s44, s26, 5\n v_add_u32 v126, s44, v5')
    a('s_cmp_eq_u32 s3, 5\n s_cbranch_scc0 Lnof\n buffer_load_dword v127, v126, s[40:43], 0 offen')
    a.label('Lnof')
    srd(36, 28, WSZ)
    a(f's_cmp_eq_u32 s30, 0\n s_mov_b32 s44, {T_W1}\n s_cmov_b32 s44, {T_WQ}\n s_mov_b32 s45, {HP}\n s_cmov_b32 s45, {QP}\n s_movk_i32 s46, {EV["1"]}\n s_cmovk_i32 s46, {EV["q"]}\n s_lshl_b32 s47, s31, 5')
    a('v_xor_b32 v5, s47, v3\n v_lshl_add_u32 v5, v4, 10, v5\n v_add_u32 v5, s44, v5\n v_lshl_add_u32 v6, v2, 4, v8')
    a('s_lshl_b32 s44, s4, 14\n s_add_u32 s45, s45, s44\n s_lshl_b32 s44, s5, 8\n s_add_u32 s45, s45, s44\n s_lshl_b32 s44, s31, 6\n s_add_u32 s45, s45, s44\n ' + ('v_lshl_add_u32 v7, v2, 4, s45' if '1' in x4 else 'v_lshl_add_u32 v7, v1, 2, s45'))
    a('s_waitcnt lgkmcnt(0)\n s_add_u32 s48, s48, 1\n s_and_b32 s48, s48, 0xff\n s_mul_i32 s50, s48, 0x01010101\n s_mov_b32 s49, 0xffffff00\n v_mov_b32 v10, s48')
    a('s_cmp_ge_u32 s2, 224\n s_cselect_b32 s44, s30, 0\n s_cmp_lg_u32 s44, 0\n s_cbranch_scc1 Lmid')
    spin(8, M_XN, 1)
    for s in range(8): a(f'ds_read_b128 v[{12+4*s}:{15+4*s}], v6 offset:{M_X + 64*s}')
    TS(3)
    spin(8, M_PROG, 's46')
    TS(4)
    if pf: a('s_waitcnt vmcnt(0)')
    for s in range(8):
        for h in range(2): a(f'ds_read_b64_tr_b16 v[{44+4*s+2*h}:{45+4*s+2*h}], v5 offset:{4096*s + 2048*h}')
    for s in range(8):
        a(f's_waitcnt lgkmcnt({14 - 2*s})')
        if '1' in x4: mfma(76 + 4 * (s & 1), 44 + 4 * s, 12 + 4 * s, s < 2)
        else: mfma(76 + 4 * (s & 1), 12 + 4 * s, 44 + 4 * s, s < 2)
    if '1' in x4:
        for r in range(4): a(f'v_add_f32 v{76+r}, v{76+r}, v{80+r}')
        for r in range(4): a(f'v_bfi_b32 v{76+r}, s49, v{76+r}, v10')
        a(f's_mov_b32 exec_lo, 0x10001\n s_mov_b32 exec_hi, 0x10001\n buffer_store_dwordx4 v[76:79], v7, s[36:39], 0 offen {stb}\n s_mov_b64 exec, -1')
    else:
        a('v_add_f32 v76, v76, v80\n v_bfi_b32 v76, s49, v76, v10')
        a(f's_mov_b64 exec, 0xffff\n buffer_store_dword v76, v7, s[36:39], 0 offen {stb}\n s_mov_b64 exec, -1')
    TS(5)
    a.label('Lmid')
    a('s_cmp_eq_u32 s30, 0\n s_cbranch_scc0 Lmlp')
    a(f'v_and_b32 v5, 6, v0\n v_xor_b32 v5, v5, v2\n v_lshlrev_b32 v5, 4, v5\n v_and_b32 v6, 7, v0\n v_lshl_add_u32 v5, v6, 7, v5\n v_bfe_u32 v6, v0, 3, 1\n v_lshl_add_u32 v5, v6, 11, v5\n v_add_u32 v5, {T_K}, v5\n v_xor_b32 v6, 64, v5')
    a(f's_and_b32 s44, s31, 1\n s_lshl_b32 s44, s44, 6\n s_lshr_b32 s45, s31, 1\n s_lshl_b32 s45, s45, 10\n s_add_u32 s45, s45, {T_V}\n v_xor_b32 v7, s44, v3\n v_lshl_add_u32 v7, v4, 11, v7\n v_add_u32 v7, s45, v7\n v_xor_b32 v12, 32, v7')
    a(f's_lshl_b32 s44, s6, 12\n s_lshl_b32 s45, s31, 10\n s_add_u32 s44, s44, s45\n s_add_u32 s44, s44, {QP}\n v_lshl_add_u32 v13, v0, 4, s44')
    a(f's_movk_i32 s45, 272\n s_mul_i32 s44, s31, 544\n v_and_b32 v14, 31, v0\n v_lshl_add_u32 v14, v14, 3, v8\n v_mad_u32_u24 v14, v4, s45, v14\n v_add_u32 v14, s44, v14')
    a('v_and_b32 v15, 7, v0\n v_mad_u32_u24 v15, v15, s45, v8\n v_lshl_add_u32 v15, v2, 4, v15')
    a('s_movk_i32 s52, 0x4000\n s_mov_b32 s53, 0x8000\n s_mov_b32 s54, 0xc000\n s_mov_b32 s55, 0x10000\n s_mov_b32 s51, 0x18000\n s_mov_b32 s56, 0x3db504f3\n s_mov_b32 s57, 0x3fb8aa3b')
    spin(8, M_PROG, EV['tq'])
    TS(2)
    def lq(m):
        for kb in range(1 if 'q' in cut else 4): a(f'buffer_load_dwordx4 v[{16+4*kb}:{19+4*kb}], v13, s[36:39], {["0","s52","s53","s54"][kb]} offen {m}')
    def kr():
        if 'k' in EV: spin(8, M_PROG, EV['k'])
        for Tt in range(4):
            for ks in range(4):
                r = 64 + (Tt * 4 + ks) * 4
                a(f'ds_read_b128 v[{r}:{r+3}], v{6 if ks & 1 else 5} offset:{Tt*4096 + (ks>>1)*1024}')
    def vr(v0=7, v1=12):
        for p in range(2):
            for i in range(2):
                for h in range(2):
                    r = 48 + (p * 2 + i) * 4 + 2 * h
                    a(f'ds_read_b64_tr_b16 v[{r}:{r+1}], v{v1 if i else v0} offset:{p*8192 + h*4096}')
    def kv():
        if qe:
            kr(); a('v_mov_b32 v62, v7\n v_mov_b32 v63, v12'); return
        spin(8, M_PROG, EV['v'])
        TS(6)
        kr(); vr()
    poll(lq, lambda: tagcheck(list(range(16, 20 if 'q' in cut else 32)), 32, 33, 34), 32, qld, kv)
    TS(7)
    for c in range(4): a(f'v_add_f32 v{16+c}, v{16+c}, v{20+c}\n v_add_f32 v{24+c}, v{24+c}, v{28+c}')
    for c in range(4): a(f'v_add_f32 v{16+c}, v{16+c}, v{24+c}')
    a(f'v_cvt_pk_bf16_f32 v16, v16, v17\n v_cvt_pk_bf16_f32 v17, v18, v19\n ds_write_b64 v14, v[16:17] offset:{M_Q}')
    a(f's_mov_b64 exec, 1\n ds_add_u32 v8, v11 offset:{M_QC}\n s_mov_b64 exec, -1')
    a('s_lshl_b32 s44, s6, 4\n s_lshr_b32 s45, s31, 1\n s_add_u32 s44, s44, s45\n s_lshl_b32 s44, s44, 14\n s_and_b32 s45, s31, 1\n s_lshl_b32 s45, s45, 13\n s_add_u32 s44, s44, s45')
    a(f's_and_b32 s45, s7, 3\n s_lshl_b32 s45, s45, 10\n s_add_u32 s44, s44, s45\n s_lshr_b32 s45, s7, 2\n s_lshl_b32 s45, s45, 6\n s_add_u32 s44, s44, s45\n s_add_u32 s44, s44, {OP}')
    if 'o' in x4: a('v_and_b32 v5, 7, v0\n v_lshlrev_b32 v5, 15, v5\n v_bfe_u32 v6, v0, 3, 1\n v_lshl_add_u32 v5, v6, 12, v5\n v_lshl_add_u32 v5, v2, 4, v5\n v_add_u32 v5, s44, v5')
    else: a('v_and_b32 v5, 1, v2\n v_lshlrev_b32 v5, 17, v5\n v_lshl_add_u32 v5, v4, 12, v5\n v_lshl_add_u32 v5, v1, 2, v5\n v_add_u32 v5, s44, v5')
    lsh = {16: 4, 64: 6}[lstride]
    a(f's_lshl_b32 s45, s31, 1\n v_lshrrev_b32 v7, 2, v0\n v_add_u32 v7, s45, v7\n s_lshl_b32 s44, s6, {9+lsh}\n s_lshl_b32 s45, s7, {lsh}\n s_add_u32 s44, s44, s45\n s_add_u32 s44, s44, {LP}')
    a(f'v_lshl_add_u32 v6, v7, {6+lsh}, s44\n v_and_b32 v12, 3, v0\n v_lshl_add_u32 v6, v12, 4, v6\n v_lshlrev_b32 v7, 2, v7\n v_cmp_lt_u32 vcc, 7, v1')
    def rq():
        for ks in range(4): a(f'ds_read_b128 v[{16+4*ks}:{19+4*ks}], v15 offset:{M_Q + 64*ks}')
    spin(8, M_QC, 4, rq)
    TS(8)
    for ks in range(4):
        for Tt in range(4): mfma(32 + 4 * Tt, 64 + (Tt * 4 + ks) * 4, 16 + 4 * ks, ks == 0)
    if qe:
        spin(8, M_PROG, EV['v'])
        TS(6)
        vr(62, 63)
    for e in range(8): a(f'v_cndmask_b32 v{16+e}, v{32+e}, v{40+e}, vcc')
    for e in range(4): a(f'v_cvt_pk_bf16_f32 v{24+e}, v{16+2*e}, v{17+2*e}')
    for e in range(4): a(f'v_lshlrev_b32 v{16+2*e}, 16, v{24+e}\n v_and_b32 v{17+2*e}, 0xffff0000, v{24+e}')
    for e in range(8): a(f'v_mul_f32 v{16+e}, s56, v{16+e}')
    for e in range(4): a(f'v_cvt_pk_bf16_f32 v{24+e}, v{16+2*e}, v{17+2*e}')
    for e in range(4): a(f'v_lshlrev_b32 v{16+2*e}, 16, v{24+e}\n v_and_b32 v{17+2*e}, 0xffff0000, v{24+e}')
    a('v_max3_f32 v28, v16, v17, v18\n v_max3_f32 v29, v19, v20, v21\n v_max3_f32 v28, v28, v22, v23\n v_max_f32 v28, v28, v29')
    dppred(28, 'v_max_f32', (8,)); xor16_32(28, 29, 'v_max_f32')
    a('v_mul_f32 v28, s57, v28')
    for e in range(8): a(f'v_fma_f32 v{16+e}, v{16+e}, s57, -v28')
    for e in range(8): a(f'v_exp_f32 v{16+e}, v{16+e}')
    for e in range(4): a(f'v_cvt_pk_bf16_f32 v{24+e}, v{16+2*e}, v{17+2*e}')
    if qe: a('s_waitcnt lgkmcnt(0)')
    for p in range(2):
        for i in range(2):
            if 'o' in x4: mfma(32 + 4 * (p * 2 + i), 48 + (p * 2 + i) * 4, 24, True)
            else: mfma(32 + 4 * (p * 2 + i), 24, 48 + (p * 2 + i) * 4, True)
    a('ds_bpermute_b32 v64, v7, v28')
    a('v_add_f32 v16, v16, v17\n v_add_f32 v18, v18, v19\n v_add_f32 v20, v20, v21\n v_add_f32 v22, v22, v23\n v_add_f32 v16, v16, v18\n v_add_f32 v20, v20, v22\n v_add_f32 v16, v16, v20')
    if 'o' in x4:
        for r in range(4): a(f'v_add_f32_dpp v{32+r}, v{40+r}, v{32+r} row_ror:8 row_mask:0xf bank_mask:0x3')
        for r in range(4): a(f'v_add_f32_dpp v{32+r}, v{36+r}, v{44+r} row_ror:8 row_mask:0xf bank_mask:0xc')
        for r in range(4): a(f'v_bfi_b32 v{32+r}, s49, v{32+r}, v10')
        a(f'buffer_store_dwordx4 v[32:35], v5, s[36:39], 0 offen {stb}')
    else:
        for r in range(4): a(f'v_permlane32_swap_b32 v{40+r}, v{36+r}')
        a('s_mov_b32 exec_hi, 0')
        for r in range(4): a(f'v_add_f32 v{32+r}, v{32+r}, v{36+r}')
        a('s_not_b64 exec, exec')
        for r in range(4): a(f'v_add_f32 v{32+r}, v{44+r}, v{40+r}')
        a('s_mov_b64 exec, -1')
        for r in range(4):
            a(f'v_bfi_b32 v{32+r}, s49, v{32+r}, v10')
            a(f'buffer_store_dword v{32+r}, v5, s[36:39], {["0","s53","s55","s51"][r]} offen {stb}')
    dppred(16, 'v_add_f32', (8,)); xor16_32(16, 17, 'v_add_f32')
    a('ds_bpermute_b32 v65, v7, v16\n v_mov_b32 v66, s50\n v_mov_b32 v67, s50')
    a(f's_lshl_b32 s44, s26, 14\n s_lshl_b32 s45, s31, 12\n s_add_u32 s44, s44, s45\n s_add_u32 s44, s44, {OP}\n v_lshl_add_u32 v13, v0, 4, s44')
    a(f's_lshr_b32 s44, s26, 1\n s_lshl_b32 s44, s44, {6+lsh}\n s_add_u32 s44, s44, {LP}\n v_lshl_add_u32 v14, v0, {lsh}, s44')
    a(f's_waitcnt lgkmcnt(0)\n s_mov_b64 exec, {"0xff" if lstride == 64 else "0x11"}\n buffer_store_dwordx4 v[64:67], v6, s[36:39], 0 offen {stb}\n s_mov_b64 exec, -1')
    TS(9)
    def cap(f):
        out = []; real = a.ins; a.ins = out.append; f(); a.ins = real; return out
    def ilv(chain, fill, k=2):
        fill = list(fill)
        for c in chain:
            a(c)
            for _ in range(k):
                if fill: a(fill.pop(0))
        for c in fill: a(c)
    def st3addr(tile, vec, fp, b):
        a(f's_lshl_b32 s54, s31, 10\n s_add_u32 s44, s54, {tile}\n v_lshl_add_u32 v{b}, v4, 12, v3\n v_add_u32 v{b}, s44, v{b}\n v_xor_b32 v{b+1}, 32, v{b}\n v_xor_b32 v{b+2}, 64, v{b}\n v_xor_b32 v{b+3}, 0x60, v{b}\n v_lshl_add_u32 v6, v2, 4, v8')
        a(f's_lshl_b32 s47, s27, 17\n s_lshl_b32 s54, s31, 15\n s_add_u32 s47, s47, s54\n s_lshl_b32 s54, s26, 6\n s_add_u32 s47, s47, s54\n s_add_u32 s47, s47, {fp}\n v_lshl_add_u32 v7, v2, 13, s47\n v_lshl_add_u32 v7, v1, 2, v7')
        a('s_mov_b32 s54, 0xffff0000\n s_mov_b32 s55, 0xffff0000\n s_mov_b32 s56, 0\n s_mov_b32 s57, -1')
    def wrd(b, half):
        for i in range(4):
            for h in range(2): a(f'ds_read_b64_tr_b16 v[{64+16*half+4*i+2*h}:{65+16*half+4*i+2*h}], v{b+i} offset:{16384*half + 8192*h}')
    def st3(cnt, vec, sl=False):
        spin(8, cnt, 4, lambda: a(f'ds_read_b128 v[16:19], v6 offset:{vec}\n ds_read_b128 v[20:23], v6 offset:{vec+64}'), sl=sl)
        TS(12)
        for half in range(2):
            for i in range(4): mfma(96 + 4 * i, 16 + 4 * half, 64 + 16 * half + 4 * i, half == 0)
        a('v_cndmask_b32 v96, v96, v100, s[54:55]\n v_cndmask_b32 v104, v104, v108, s[54:55]\n v_cndmask_b32 v96, v96, v104, s[56:57]\n v_bfi_b32 v96, s49, v96, v10')
        a(f'buffer_store_dword v96, v7, s[36:39], 0 offen {stb}')
    def lo1(m): a(f'buffer_load_dwordx4 v[32:35], v14, s[36:39], 0 offen {m}')
    def lo2(m):
        for u in range(4): a(f'buffer_load_dwordx4 v[{16+4*u}:{19+4*u}], v13, s[36:39], 0 offen offset:{1024*u} {m}')
    def lh(m): a(f'buffer_load_dwordx4 v[12:15], v5, s[36:39], 0 offen {m}')
    if fast:
        st3addr(T_WO, M_O, FP, 48)
        a('s_lshr_b32 s44, s31, 1\n s_lshl_b32 s44, s44, 6\n s_and_b32 s45, s31, 1\n s_lshl_b32 s45, s45, 3\n s_add_u32 s44, s44, s45\n v_lshl_add_u32 v15, v12, 4, v8\n v_lshl_add_u32 v15, v2, 1, v15\n v_add_u32 v15, s44, v15')
        a(f's_cmp_ge_u32 s2, 224\n s_cselect_b32 s46, {3 if late else 2}, 2')
        spin(8, M_GO, 's46')
        lo1(ldb); lo2(ldb)
        if min(to, big[2] if big else to, lag[1] if lag else to) < EV['o1']: spin(8, M_PROG, EV['o1'])
        wrd(48, 0)
        a('s_waitcnt vmcnt(0)')
        TS(10)
        a(f'ds_read_b32 v9, v8 offset:{M_PROG}')
        wrd(48, 1)
        mx = cap(lambda: (a('v_mov_b32 v36, v32'), dppred(36, 'v_max_f32', (8, 4, 2, 1)), xor16_32(36, 37, 'v_max_f32')))
        tc = cap(lambda: (tagcheck(list(range(16, 32)), 40, 41, 42), a('v_xor_b32 v41, s50, v34\n v_or_b32 v42, v40, v41\n v_cmp_ne_u32 vcc, 0, v42')))
        ilv(mx, tc)
        a('s_cbranch_vccz Logo')
        if cmb is None:
            poll(lo1, lambda: a('v_xor_b32 v36, s50, v34'), 36, None, None, sl=sl_l)
            poll(lo2, lambda: tagcheck(list(range(16, 32)), 36, 37, 38), 36, None, None, sl=0)
        else:
            a(f's_mov_b32 s58, {SPIN}')
            a.label('Lcmb')
            a(f's_sleep {cmb}\n v_cmp_ne_u32 vcc, 0, v41\n s_nop 0\n s_mov_b64 exec, vcc')
            lo1(ldb)
            a('s_mov_b64 exec, -1\n v_cmp_ne_u32 vcc, 0, v40\n s_nop 0\n s_mov_b64 exec, vcc')
            lo2(ldb)
            a('s_mov_b64 exec, -1\n s_waitcnt vmcnt(0)')
            for c in tc: a(c)
            a('s_cbranch_vccz Lcmbd\n s_sub_u32 s58, s58, 1\n s_cbranch_scc0 Lcmb')
            a.label('Lcmbd')
        for c in mx: a(c)
        a.label('Logo')
        TS(11)
        a('v_sub_f32 v32, v32, v36\n v_exp_f32 v32, v32')
        sm = cap(lambda: (a('v_mul_f32 v33, v32, v33'), dppred(33, 'v_add_f32', (8, 4, 2, 1)), xor16_32(33, 40, 'v_add_f32'), a('v_rcp_f32 v33, v33')))
        def comb():
            for c in range(4): a(f'v_mul_f32_dpp v{36+c}, v32, v{16+c} quad_perm:[0,0,0,0] row_mask:0xf bank_mask:0xf')
            for u in range(1, 4):
                for c in range(4): a(f'v_fmac_f32_dpp v{36+c}, v32, v{16+4*u+c} quad_perm:[{u},{u},{u},{u}] row_mask:0xf bank_mask:0xf')
        ilv(sm[:8], cap(comb))
        t2 = cap(lambda: (a('v_permlane32_swap_b32 v36, v38\n v_permlane32_swap_b32 v37, v39\n v_add_f32 v36, v36, v38\n v_add_f32 v37, v37, v39\n v_permlane16_swap_b32 v36, v37\n v_add_f32 v36, v36, v37'), dppred(36, 'v_add_f32', (8, 4))))
        a(sm[8]); a(t2[0]); a(t2[1]); a(sm[9]); a(t2[2]); a(t2[3]); a(sm[10]); a(sm[11])
        a(t2[4]); a(t2[5]); a('s_waitcnt lgkmcnt(0)\n v_readfirstlane_b32 s59, v9'); a(t2[6]); a(t2[7])
        a(f'v_mul_f32 v36, v36, v33\n v_cvt_pk_bf16_f32 v36, v36, v36\n ds_write_b16 v15, v36 offset:{M_O}')
        a(f's_mov_b64 exec, 1\n ds_add_u32 v8, v11 offset:{M_OC}\n s_mov_b64 exec, -1')
        a(f's_cmp_ge_u32 s59, {EV["o"]}\n s_cbranch_scc1 Lwok')
        spin(8, M_PROG, EV['o'], sl=False)
        wrd(48, 1)
        a.label('Lwok')
        st3(M_OC, M_O)
        if d_f is not None or fc is not None or fl: a(f's_mov_b64 exec, 1\n ds_add_u32 v8, v11 offset:{M_AC}\n s_mov_b64 exec, -1')
        TS(13)
        a('s_branch Lfin')
        a.label('Lmlp')
        st3addr(T_W2, M_H, FP + 4096, 48)
        a('s_cmp_eq_u32 s3, 5\n s_cbranch_scc1 Lmlp1')
        spin(8, M_PROG, EV['2'])
        wrd(48, 0); wrd(48, 1)
        a('s_branch Lmlp2')
        a.label('Lmlp1')
        a(f's_mul_i32 s44, s26, 224\n s_add_u32 s44, s44, {HP}\n v_min_u32 v5, 13, v1\n v_lshl_add_u32 v5, v5, 4, s44\n v_lshl_add_u32 v5, v2, 14, v5')
        a('v_lshrrev_b32 v24, 3, v1\n v_lshl_add_u32 v24, v24, 6, v8\n v_and_b32 v25, 3, v1\n v_lshl_add_u32 v24, v25, 4, v24\n v_bfe_u32 v25, v1, 2, 1\n v_lshl_add_u32 v24, v25, 3, v24\n v_lshl_add_u32 v24, v2, 1, v24\n v_cmp_gt_u32 s[52:53], 14, v1\n v_mov_b32 v25, 4')
        a(f's_cmp_ge_u32 s2, 224\n s_cselect_b32 s46, {2 if late else 1}, 1')
        spin(8, M_GO, 's46')
        def w2r():
            if min(th, big[3] if big else th, lag[2] if lag else th) < EV['2']: spin(8, M_PROG, EV['2'])
            wrd(48, 0); wrd(48, 1)
        poll(lh, lambda: tagcheck([12, 13, 14, 15], 16, 17, 18), 16, 'sc1', w2r, sl=sl_h)
        TS(10)
        a('v_permlane32_swap_b32 v12, v14\n v_permlane32_swap_b32 v13, v15\n v_add_f32 v12, v12, v14\n v_add_f32 v13, v13, v15\n v_permlane16_swap_b32 v12, v13\n v_add_f32 v12, v12, v13')
        a('v_cvt_pk_bf16_f32 v12, v12, v12\n v_lshlrev_b32 v12, 16, v12\n v_mul_f32 v16, 0xbfb8aa3b, v12\n v_exp_f32 v16, v16\n v_add_f32 v16, 1.0, v16\n v_rcp_f32 v16, v16\n v_mul_f32 v12, v12, v16')
        a(f'v_cvt_pk_bf16_f32 v12, v12, v12\n v_cndmask_b32 v12, 0, v12, s[52:53]\n ds_write_b16 v24, v12 offset:{M_H}\n ds_write_b32 v8, v25 offset:{M_HC}')
        a.label('Lmlp2')
        st3(M_HC, M_H, True)
    else:
        if d_o: a(f's_sleep {d_o}')
        spin(8, M_PROG, EV['to'])
        def lo1(m): a(f'buffer_load_dwordx4 v[32:35], v14, s[36:39], 0 offen {m}')
        def lo2(m):
            for u in range(1 if 'o' in cut else 4): a(f'buffer_load_dwordx4 v[{16+4*u}:{19+4*u}], v13, s[36:39], 0 offen offset:{1024*u} {m}')
        poll(lo1, lambda: a('v_xor_b32 v36, s50, v34'), 36, lld, (lambda: lo2(ldb if old == 'sc1' else old)) if allin else None, sl=sl_l)
        TS(10)
        def wts():
            a('v_mov_b32 v36, v32'); dppred(36, 'v_max_f32', (8, 4, 2, 1)); xor16_32(36, 37, 'v_max_f32')
            a('v_sub_f32 v32, v32, v36\n v_exp_f32 v32, v32\n v_mul_f32 v33, v32, v33')
            dppred(33, 'v_add_f32', (8, 4, 2, 1)); xor16_32(33, 37, 'v_add_f32')
            a('v_rcp_f32 v33, v33')
            a('s_lshr_b32 s44, s31, 1\n s_lshl_b32 s44, s44, 6\n s_and_b32 s45, s31, 1\n s_lshl_b32 s45, s45, 3\n s_add_u32 s44, s44, s45\n v_lshl_add_u32 v15, v12, 4, v8\n v_lshl_add_u32 v15, v2, 1, v15\n v_add_u32 v15, s44, v15')
        poll(lo2, lambda: tagcheck(list(range(16, 20 if 'o' in cut else 32)), 36, 37, 38), 36, None if allin else old, wts, sl=0)
        TS(11)
        for c in range(4): a(f'v_mul_f32_dpp v{36+c}, v32, v{16+c} quad_perm:[0,0,0,0] row_mask:0xf bank_mask:0xf')
        for u in range(1, 4):
            for c in range(4): a(f'v_fmac_f32_dpp v{36+c}, v32, v{16+4*u+c} quad_perm:[{u},{u},{u},{u}] row_mask:0xf bank_mask:0xf')
        a('v_permlane32_swap_b32 v36, v38\n v_permlane32_swap_b32 v37, v39\n v_add_f32 v36, v36, v38\n v_add_f32 v37, v37, v39\n v_permlane16_swap_b32 v36, v37\n v_add_f32 v36, v36, v37')
        dppred(36, 'v_add_f32', (8, 4))
        a(f'v_mul_f32 v36, v36, v33\n v_cvt_pk_bf16_f32 v36, v36, v36\n ds_write_b16 v15, v36 offset:{M_O}')
        a(f's_mov_b64 exec, 1\n ds_add_u32 v8, v11 offset:{M_OC}\n s_mov_b64 exec, -1')
        a(f's_mov_b32 s44, {T_WO}\n s_movk_i32 s45, {M_O}\n s_movk_i32 s46, {M_OC}\n s_movk_i32 s52, {EV["o1"]}\n s_movk_i32 s53, {EV["o"]}\n s_mov_b32 s47, {FP}\n s_branch Lst3')
        a.label('Lmlp')
        a('s_cmp_eq_u32 s3, 5\n s_cbranch_scc0 Lmlp2')
        a(f's_mul_i32 s44, s26, 224\n s_add_u32 s44, s44, {HP}\n v_min_u32 v5, 13, v1\n v_lshl_add_u32 v5, v5, 4, s44\n v_lshl_add_u32 v5, v2, 14, v5')
        if d_h: a(f's_sleep {d_h}')
        spin(8, M_PROG, EV['th'])
        def lh(m): a(f'buffer_load_dwordx4 v[12:15], v5, s[36:39], 0 offen {m}')
        poll(lh, lambda: tagcheck([12, 13, 14, 15], 16, 17, 18), 16, sl=sl_h)
        TS(10)
        for c in range(4): xor16_32(12 + c, 16 + c, 'v_add_f32')
        a('v_cvt_pk_bf16_f32 v12, v12, v13\n v_cvt_pk_bf16_f32 v14, v14, v15')
        a('v_and_b32 v13, 0xffff0000, v12\n v_lshlrev_b32 v12, 16, v12\n v_and_b32 v15, 0xffff0000, v14\n v_lshlrev_b32 v14, 16, v14')
        for c in range(4): a(f'v_mul_f32 v{16+c}, 0xbfb8aa3b, v{12+c}')
        for c in range(4): a(f'v_exp_f32 v{16+c}, v{16+c}')
        for c in range(4): a(f'v_add_f32 v{16+c}, 1.0, v{16+c}')
        for c in range(4): a(f'v_rcp_f32 v{16+c}, v{16+c}')
        for c in range(4): a(f'v_mul_f32 v{12+c}, v{12+c}, v{16+c}')
        a('v_cvt_pk_bf16_f32 v12, v12, v13\n v_cvt_pk_bf16_f32 v13, v14, v15\n v_cmp_gt_u32 vcc, 14, v1\n v_cndmask_b32 v12, 0, v12, vcc\n v_cndmask_b32 v13, 0, v13, vcc')
        a(f'v_mov_b32 v14, 4\n s_mov_b64 exec, 0xffff\n ds_write_b64 v125, v[12:13] offset:{M_H}\n ds_write_b32 v8, v14 offset:{M_HC}\n s_mov_b64 exec, -1')
        a.label('Lmlp2')
        a(f's_mov_b32 s44, {T_W2}\n s_movk_i32 s45, {M_H}\n s_movk_i32 s46, {M_HC}\n s_movk_i32 s52, {EV["21"]}\n s_movk_i32 s53, {EV["2"]}\n s_mov_b32 s47, {FP + 4096}')
        a.label('Lst3')
        a('s_lshl_b32 s54, s31, 10\n s_add_u32 s44, s44, s54\n v_lshl_add_u32 v12, v4, 12, v3\n v_add_u32 v12, s44, v12\n v_xor_b32 v13, 32, v12\n v_xor_b32 v14, 64, v12\n v_xor_b32 v15, 0x60, v12')
        a('v_add_u32 v5, s46, v8\n v_lshl_add_u32 v6, v2, 4, v8\n v_add_u32 v6, s45, v6')
        a('s_lshl_b32 s54, s27, 17\n s_add_u32 s47, s47, s54\n s_lshl_b32 s54, s31, 15\n s_add_u32 s47, s47, s54\n s_lshl_b32 s54, s26, 6\n s_add_u32 s47, s47, s54\n ' + ('v_lshl_add_u32 v7, v1, 13, s47\n v_lshl_add_u32 v7, v2, 4, v7' if 'f' in x4 else 'v_lshl_add_u32 v7, v2, 13, s47\n v_lshl_add_u32 v7, v1, 2, v7'))
        if 'f' in x4: a('s_mov_b32 s54, 0xaaaaaaaa\n s_mov_b32 s55, s54\n s_mov_b32 s56, 0xcccccccc\n s_mov_b32 s57, s56')
        else: a('s_mov_b32 s54, 0xffff0000\n s_mov_b32 s55, 0xffff0000\n s_mov_b32 s56, 0\n s_mov_b32 s57, -1')
        spin(8, M_PROG, 's52')
        for i in range(4):
            for h in range(2): a(f'ds_read_b64_tr_b16 v[{24+4*i+2*h}:{25+4*i+2*h}], v{12+i} offset:{8192*h}')
        spin(5, 0, 4, lambda: a('ds_read_b128 v[16:19], v6\n ds_read_b128 v[20:23], v6 offset:64'))
        TS(12)
        for i in range(4): mfma(56 + 4 * i, *((24 + 4 * i, 16) if 'f' in x4 else (16, 24 + 4 * i)), True)
        spin(8, M_PROG, 's53')
        for i in range(4):
            for h in range(2): a(f'ds_read_b64_tr_b16 v[{40+4*i+2*h}:{41+4*i+2*h}], v{12+i} offset:{16384 + 8192*h}')
        for i in range(4):
            a(f's_waitcnt lgkmcnt({6 - 2*i})')
            mfma(56 + 4 * i, *((40 + 4 * i, 20) if 'f' in x4 else (20, 40 + 4 * i)), False)
        if 'f' in x4:
            for r in range(4): a(f'v_cndmask_b32 v{56+r}, v{56+r}, v{60+r}, s[54:55]')
            for r in range(4): a(f'v_cndmask_b32 v{64+r}, v{64+r}, v{68+r}, s[54:55]')
            for r in range(4): a(f'v_cndmask_b32 v{56+r}, v{56+r}, v{64+r}, s[56:57]')
            for r in range(4): a(f'v_bfi_b32 v{56+r}, s49, v{56+r}, v10')
            a(f's_mov_b32 exec_lo, 0xf000f\n s_mov_b32 exec_hi, 0xf000f\n buffer_store_dwordx4 v[56:59], v7, s[36:39], 0 offen {stb}\n s_mov_b64 exec, -1')
        else:
            a('v_cndmask_b32 v56, v56, v60, s[54:55]\n v_cndmask_b32 v64, v64, v68, s[54:55]\n v_cndmask_b32 v56, v56, v64, s[56:57]\n v_bfi_b32 v56, s49, v56, v10')
            a(f'buffer_store_dword v56, v7, s[36:39], 0 offen {stb}')
        if d_f is not None: a(f's_mov_b64 exec, 1\n ds_add_u32 v5, v11 offset:8\n s_mov_b64 exec, -1')
    TS(13)
    a('s_cmp_eq_u32 s3, 5\n s_cbranch_scc0 Lfin\n s_cmp_eq_u32 s27, 0\n s_cbranch_scc0 Lfin')
    a(f's_lshl_b32 s44, s26, 13\n s_add_u32 s44, s44, {FP}\n v_lshl_add_u32 v5, v0, 4, s44\n s_movk_i32 s45, 4096')
    srd(40, 24, 2048)
    def lf(base, so):
        def f(m):
            for u in range(4): a(f'buffer_load_dwordx4 v[{base+4*u}:{base+3+4*u}], v5, s[36:39], {so} offen offset:{1024*u} {m}')
        return f
    if d_f is not None:
        spin(8, M_AC, 4)
        if d_f: a(f's_sleep {d_f}')
    if fl:
        a('ds_read_b32 v9, v8 offset:24\n s_waitcnt lgkmcnt(0)\n v_readfirstlane_b32 s59, v9\n s_nop 0\n s_cmp_ge_u32 s59, 4\n s_cbranch_scc1 Lnw')
        spin(8, M_AC, 4)
        a.label('Lnw')
    if fc is not None:
        lf(32, 's45')(ldb)
        a(f'v_not_b32 v16, s48\n s_mov_b32 s58, {SPIN}')
        a.label('Lfc')
        a(f's_waitcnt vmcnt(0)\n ds_read_b32 v9, v8 offset:{M_AC}')
        tagcheck(list(range(16, 32)), 15, 13, 14)
        tagcheck(list(range(32, 48)), 12, 13, 14)
        a('v_or_b32 v13, v12, v15\n v_cmp_ne_u32 vcc, 0, v13\n s_cbranch_vccz Lfcd')
        a(f's_sleep {sl_f}\n v_cmp_ne_u32 vcc, 0, v12\n s_waitcnt lgkmcnt(0)\n v_readfirstlane_b32 s59, v9\n s_mov_b64 exec, vcc')
        lf(32, 's45')(ldb)
        a(f's_mov_b64 exec, -1\n s_cbranch_vccz Lfca\n s_cmp_ge_u32 s59, {fc}\n s_cbranch_scc0 Lfcn')
        a.label('Lfca')
        a('v_cmp_ne_u32 vcc, 0, v15\n s_nop 0\n s_mov_b64 exec, vcc')
        lf(16, '0')(ldb)
        a('s_mov_b64 exec, -1')
        a.label('Lfcn')
        a('s_sub_u32 s58, s58, 1\n s_cbranch_scc0 Lfc')
        a.label('Lfcd')
    for base, so in ((32, 's45'), (16, '0')):
        if fc is not None: pass
        elif fboth:
            poll(lf(base, so), lambda: tagcheck(list(range(base, base + 16)), 12, 13, 14), 12, 'sc1' if base == 32 else None, (lambda: lf(16, '0')(ldb)) if base == 32 else None, sl=sl_f)
        else:
            poll(lf(base, so), lambda: tagcheck(list(range(base, base + 16)), 12, 13, 14), 12, sl=sl_f)
        for c in range(4): a(f'v_add_f32 v{base+c}, v{base+c}, v{base+4+c}\n v_add_f32 v{base+8+c}, v{base+8+c}, v{base+12+c}')
        for c in range(4): a(f'v_add_f32 v{base+c}, v{base+c}, v{base+8+c}')
        TS(11 if base == 32 else 14)
    for c in range(4): a(f'v_permlane32_swap_b32 v{16+c}, v{32+c}')
    for c in range(4): a(f'v_add_f32 v{16+c}, v{16+c}, v{32+c}')
    a('v_permlane16_swap_b32 v16, v18\n v_permlane16_swap_b32 v17, v19\n v_add_f32 v16, v16, v18\n v_add_f32 v17, v17, v19')
    for r in (8, 4):
        for c in range(2): a(f'v_add_f32_dpp v{16+c}, v{16+c}, v{16+c} row_ror:{r} row_mask:0xf bank_mask:0xf')
    a('v_cvt_pk_bf16_f32 v16, v16, v17\n v_mov_b32 v17, v16\n v_permlane32_swap_b32 v16, v17')
    a('v_lshlrev_b32 v22, 16, v127\n v_and_b32 v23, 0xffff0000, v127')
    a('v_lshlrev_b32 v18, 16, v16\n v_and_b32 v19, 0xffff0000, v16\n v_add_f32 v18, v18, v22\n v_add_f32 v19, v19, v23\n v_cvt_pk_bf16_f32 v16, v18, v19')
    a('v_lshlrev_b32 v18, 16, v16\n v_and_b32 v19, 0xffff0000, v16\n v_lshlrev_b32 v20, 16, v17\n v_and_b32 v21, 0xffff0000, v17')
    a('v_add_f32 v18, v18, v20\n v_add_f32 v19, v19, v21\n v_cvt_pk_bf16_f32 v16, v18, v19')
    a('s_mov_b64 exec, 0xf000f\n buffer_store_dword v16, v126, s[40:43], 0 offen')
    a('s_cmp_eq_u32 s2, 0\n s_cbranch_scc0 Lfin\n s_mov_b64 exec, 1\n buffer_store_dword v10, v126, s[36:39], 0 offen')
    if not seq:
        a('s_branch Lfin'); loader2()
    a.label('Lfin')
    if diag:
        TS(15)
        a(f's_mov_b64 exec, 1\n s_mul_i32 s6, s2, {NW}\n s_add_u32 s6, s6, s3\n s_lshl_b32 s6, s6, 7\n s_add_u32 s6, s6, {TSB}\n v_mov_b32 v4, s6\n s_waitcnt lgkmcnt(0)')
        for i in range(8):
            for c in range(4): a(f'v_mov_b32 v{8+4*i+c}, s{64+4*i+c}')
            a(f'buffer_store_dwordx4 v[{8+4*i}:{11+4*i}], v4, s[36:39], 0 offen offset:{16*i}')
    if probe:
        TS(15)
        if len(probe) > 2: a(f's_and_b32 s58, s2, 7\n s_cmp_eq_u32 s58, {probe[2]}\n s_cbranch_scc0 Lend')
        a(f's_cmp_eq_u32 s3, {probe[0]}\n s_cbranch_scc0 Lend\n s_waitcnt lgkmcnt(0)\n s_mov_b32 s58, 100000')
        a.label('Lpr')
        a('s_memrealtime s[66:67]\n s_waitcnt lgkmcnt(0)\n s_sub_u32 s66, s66, s64\n s_cmp_ge_u32 s66, 3000\n s_cbranch_scc1 Lend\n s_sleep 1\n s_sub_u32 s58, s58, 1\n s_cbranch_scc0 Lpr')
    a.label('Lend')
    a('s_endpgm')
    return wrap(a, 64 * NW, 163840, 128)

if __name__ == '__main__':
    V = eval(open('variants.txt').read())
    for k, kw in V.items():
        open(f'bench/{k}d.s', 'w').write(gen(diag=True, **kw))
        open(f'bench/{k}.s', 'w').write(gen(**kw))
```
